```python
import torch

def _softmax(x, axis=-1):
    return torch.softmax(x, dim=axis)
def _gelu(x):
    return torch.nn.functional.gelu(x, approximate="tanh")
def _silu(x):
    return torch.nn.functional.silu(x)
def _sigmoid(x):
    return torch.sigmoid(x)
def _layernorm(x, axis=-1, eps=1e-5):
    m = x.mean(dim=axis, keepdim=True)
    v = x.var(dim=axis, keepdim=True, unbiased=False)
    return (x - m) / torch.sqrt(v + eps)
def _scatter_add(tgt, idx, src, axis=0):
    return tgt.clone().index_add_(axis, idx, src)
def _segment_sum(src, seg, n):
    out = torch.zeros((n,) + src.shape[1:], dtype=src.dtype)
    return out.index_add_(0, seg, src)
def _pad(x, pw):
    flat = tuple(v for pair in reversed(pw) for v in pair)
    return torch.nn.functional.pad(x, flat)

kernel_name = 'standalone__self_sup_conv_stem_hubert__speech'

def setup_inputs():

    _w = (lambda a: (lambda t: t.to(torch.bfloat16) if t.is_floating_point() else t)(torch.as_tensor(a)))
    B, T, D, K = 2, 4000, 256, 31
    scale = (1.0 / (K * D)) ** 0.5
    return {
        "x": _w((lambda *s: torch.randn(*s, dtype=torch.bfloat16) * 0.05)(B, T, D)),
        "w": _w((lambda *s: torch.randn(*s, dtype=torch.bfloat16) * 0.05)(K, D, D) * scale),
        "b": _w((lambda *s: torch.randn(*s, dtype=torch.bfloat16) * 0.05)(D) * 0.1),
        "gamma": _w(torch.ones((D,), dtype=float)),
        "beta": _w(torch.zeros((D,), dtype=float)),
    }

def reference(x, w, b, gamma, beta):
    B, T, D = x.shape
    K = w.shape[0]
    s = 2
    L = (T - K) // s + 1
    y = torch.einsum('blc,cd->bld', x[:, 0 : s * L : s, :], w[0])
    for i in range(1, K):
        y = y + torch.einsum('blc,cd->bld', x[:, i : i + s * L : s, :], w[i])
    y = y + b[None, None, :]
    mu = y.mean(1, keepdims=True)
    var = ((y - mu) ** 2).mean(1, keepdims=True)
    yn = (y - mu) / torch.sqrt(var + 1e-5)
    yn = yn * gamma[None, None, :] + beta[None, None, :]
    return _gelu(yn)
```

```python
import sys

DEBUG_COPY_Y = bool(int(__import__("os").environ.get("DEBUG_COPY_Y", "0")))

KA = "standalone__self_sup_conv_stem_hubert__speech_kernel"
KB = "hubert_norm_kernel"

R = 4
LDS_STATS = 65536
LDS_BYTES = 65536 + 2048

X_BYTES = 2 * 4000 * 256 * 2
W_BYTES = 31 * 256 * 256 * 2
Y_ROWS_PAD = 2048
Y_BYTES = 2 * Y_ROWS_PAD * 256 * 4
STATS_OFF = Y_BYTES
WS_USED = Y_BYTES + 65536
OUT_BYTES = 2 * 1985 * 256 * 2

out = []
def emit(s=""):
    out.append(s)
def I(s):
    out.append("    " + s)

V_XOFF = 1
V_WOFF = [2, 3, 4, 5]
V_TR = [6, 7]
A_BASE = 16
B_BASE = 144
NUM_VGPR = 176
ACC_OFF = 176
def A(set_, slot, s):
    b = A_BASE + set_ * 64 + slot * 8 + 4 * s
    return b
def B(buf, s, nt):
    return B_BASE + buf * 16 + (s * 2 + nt) * 4
def ACC(j, nt):
    return (j * 2 + nt) * 4
def vr(b, n=4):
    return "v[%d:%d]" % (b, b + n - 1)
def ar(b, n=4):
    return "a[%d:%d]" % (b, b + n - 1)

S_WV = 3
S_X = 4
S_BIAS = 8
S_WS = 10
SRD_X = 12
SRD_W = 16
SRD_WS = 20
SRD_B = 24
S_LDS = 28
S_NT = 29
S_XB = 30
S_W0 = 36
S_WT = 37
S_B = 38
S_L0 = 39
S_MT = 40
S_TMP = 41
S_TMP2 = 42
S_NVALID = 43
S_EXEC_SAVE = 44
S_MASK = 46
S_YB = 48
S_HI = 56

class VmQ:
    def __init__(self):
        self.q = []
    def issue(self, tag):
        self.q.append(tag)
    def wait_for(self, tag):
        idx = None
        for i, t in enumerate(self.q):
            if t == tag:
                idx = i
        if idx is None:
            return
        n = len(self.q) - 1 - idx
        assert n <= 63
        I("s_waitcnt vmcnt(%d)" % n)
        self.q = self.q[idx + 1:]
    def wait_all(self):
        I("s_waitcnt vmcnt(0)")
        self.q = []

def xoff(g, p, s):
    tot = (2 * g + p) * 512 + 64 * s
    return S_XB + tot // 4096, tot % 4096

def tap_of(sig):
    return 2 * sig if sig < 16 else 2 * (sig - 16) + 1

def gen_kernel_a():
    vm = VmQ()
    emit(".globl %s" % KA)
    emit(".p2align 8")
    emit(".type %s,@function" % KA)
    emit("%s:" % KA)
    I("s_cmp_ge_u32 s2, 256")
    I("s_cbranch_scc1 KA_END")
    I("s_load_dwordx4 s[4:7], s[0:1], 0")
    I("s_load_dwordx2 s[8:9], s[0:1], 16")
    I("s_load_dwordx2 s[10:11], s[0:1], 56")
    I("v_and_b32 v8, 63, v0")
    I("v_lshrrev_b32 v9, 6, v0")
    I("v_and_b32 v10, 15, v8")
    I("v_lshrrev_b32 v11, 4, v8")
    I("v_readfirstlane_b32 s%d, v9" % S_WV)
    I("v_lshlrev_b32 v%d, 13, v10" % V_XOFF)
    I("v_lshl_add_u32 v%d, v11, 4, v%d" % (V_XOFF, V_XOFF))
    I("v_lshrrev_b32 v12, 2, v8")
    I("v_and_b32 v13, 3, v8")
    I("v_lshrrev_b32 v14, 5, v8")
    I("v_lshlrev_b32 v14, 1, v14")
    I("v_xor_b32 v13, v13, v14")
    I("v_lshlrev_b32 v%d, 9, v12" % V_WOFF[0])
    I("v_lshl_add_u32 v%d, v13, 4, v%d" % (V_WOFF[0], V_WOFF[0]))
    for c in range(1, 4):
        I("v_add_u32 v%d, %d, v%d" % (V_WOFF[c], 7168 * c, V_WOFF[0]))
    I("v_lshrrev_b32 v12, 2, v10")
    I("v_lshl_add_u32 v12, v11, 3, v12")
    I("v_lshlrev_b32 v12, 6, v12")
    I("v_and_b32 v13, 3, v10")
    I("v_lshl_add_u32 v12, v13, 3, v12")
    I("v_and_b32 v13, 1, v11")
    I("v_lshlrev_b32 v13, 5, v13")
    I("s_lshl_b32 s%d, s%d, 14" % (S_LDS, S_WV))
    I("v_add_u32 v%d, v12, v13" % V_TR[0])
    I("v_add_u32 v%d, s%d, v%d" % (V_TR[0], S_LDS, V_TR[0]))
    I("v_xor_b32 v%d, 32, v%d" % (V_TR[1], V_TR[0]))
    I("s_and_b32 s%d, s2, 7" % S_NT)
    I("s_lshr_b32 s%d, s2, 3" % S_TMP)
    I("s_lshr_b32 s%d, s%d, 4" % (S_B, S_TMP))
    I("s_and_b32 s%d, s%d, 15" % (S_MT, S_TMP))
    I("s_lshl_b32 s%d, s%d, 7" % (S_L0, S_MT))
    I("s_waitcnt lgkmcnt(0)")
    for srd, ptr, nb in ((SRD_X, 4, X_BYTES), (SRD_W, 6, W_BYTES), (SRD_WS, 10, WS_USED), (SRD_B, 8, 512)):
        I("s_mov_b32 s%d, s%d" % (srd, ptr))
        I("s_and_b32 s%d, s%d, 0xffff" % (srd + 1, ptr + 1))
        I("s_mov_b32 s%d, %d" % (srd + 2, nb))
        I("s_mov_b32 s%d, 0x00020000" % (srd + 3))
    I("s_mul_i32 s%d, s%d, 2048000" % (S_TMP, S_B))
    I("s_lshl_b32 s%d, s%d, 10" % (S_TMP2, S_L0))
    I("s_add_u32 s%d, s%d, s%d" % (S_TMP, S_TMP, S_TMP2))
    I("s_lshl_b32 s%d, s%d, 7" % (S_TMP2, S_WV))
    I("s_add_u32 s%d, s%d, s%d" % (S_XB, S_TMP, S_TMP2))
    for i in range(1, 6):
        I("s_add_u32 s%d, s%d, %d" % (S_XB + i, S_XB, 4096 * i))
    I("s_lshl_b32 s%d, s%d, 15" % (S_TMP, S_WV))
    I("s_lshl_b32 s%d, s%d, 6" % (S_TMP2, S_NT))
    I("s_add_u32 s%d, s%d, s%d" % (S_W0, S_TMP, S_TMP2))
    I("s_mov_b32 s%d, 0x80008000" % S_MASK)
    I("s_mov_b32 s%d, 0x80008000" % (S_MASK + 1))
    I("s_sub_u32 s%d, 1985, s%d" % (S_NVALID, S_L0))
    I("s_min_u32 s%d, s%d, 128" % (S_NVALID, S_NVALID))
    for i in range(64):
        I("v_accvgpr_write_b32 a%d, 0" % i)

    def dma(sig):
        st = sig % R
        L = []
        L.append(("s", "s_add_u32 s%d, s%d, %d" % (S_WT, S_W0, tap_of(sig) * 131072)))
        L.append(("s", "s_add_u32 m0, s%d, %d" % (S_LDS, st * 4096)))
        L.append(("s", "s_nop 0"))
        for c in range(4):
            L.append(("vm:dma%d" % sig,
                      "buffer_load_dwordx4 v%d, s[%d:%d], s%d offen offset:%d lds" % (V_WOFF[c], SRD_W, SRD_W + 3, S_WT, 1024 * c)))
        return L

    def xload(set_, slot, g, p, tag):
        L = []
        for s in range(2):
            sg, imm = xoff(g, p, s)
            L.append(("vm:" + tag, "buffer_load_dwordx4 %s, v%d, s[%d:%d], s%d offen offset:%d" %
                      (vr(A(set_, slot, s)), V_XOFF, SRD_X, SRD_X + 3, sg, imm)))
        return L

    def trreads(sig):
        buf = sig % 2
        st = sig % R
        L = []
        for s in range(2):
            for nt in range(2):
                for jh in range(2):
                    b = B(buf, s, nt) + 2 * jh
                    L.append(("ds", "ds_read_b64_tr_b16 %s, v%d offset:%d" % (vr(b, 2), V_TR[nt], st * 4096 + (32 * s + 4 * jh) * 64)))
        return L

    def put(items):
        for kind, txt in items:
            if kind.startswith("vm:"):
                vm.issue(kind[3:])
            elif kind.startswith("wait:"):
                vm.wait_for(kind[5:])
                continue
            I(txt)

    for sig in range(R):
        put(dma(sig))
    for f in range(8):
        put(xload(0, f, f, 0, "xa0"))
    vm.wait_for("dma0")
    put(trreads(0))
    NSTEP = 31
    for sig in range(NSTEP):
        p = 0 if sig < 16 else 1
        u = sig if sig < 16 else sig - 16
        umax = 15 if p == 0 else 14
        buf = sig % 2
        emit("; ---- step %d (p=%d u=%d tap=%d)" % (sig, p, u, tap_of(sig)))
        side = {}
        def at(k, items):
            side.setdefault(k, []).extend(items)
        if sig == 0:
            pre = [("wait:xa0", "")]
        elif sig == 16:
            pre = [("wait:xa1", "")]
        else:
            pre = []
        g_new = u + 8
        if g_new <= umax + 7:
            slot = u % 8
            for k in range(8):
                reg = A(p, slot, 0) + k
                at(3 + k // 2, [("v", "v_mov_b32_dpp v%d, v%d row_shl:1 row_mask:0xf bank_mask:0xf" % (reg, reg))])
            L = [("s", "s_mov_b64 exec, s[%d:%d]" % (S_MASK, S_MASK + 1))]
            L += xload(p, slot, g_new, p, "bnd%d" % sig)
            L += [("s", "s_mov_b64 exec, -1")]
            at(7, L)
        if u >= 1:
            at(27, [("wait:bnd%d" % (sig - 1), "")])
        if sig + R < NSTEP:
            at(9, dma(sig + R))
        if sig + 1 < NSTEP:
            L = [("wait:dma%d" % (sig + 1), "")] + trreads(sig + 1)
            for k, it in enumerate(L):
                at(14 + k // 2, [it])
        if sig < 8:
            at(22, xload(1, sig, sig, 1, "xa1"))
        I("s_waitcnt lgkmcnt(0)")
        put(pre)
        idx = 0
        for j in range(8):
            slot = (u + j) % 8
            for s in range(2):
                for nt in range(2):
                    I("v_mfma_f32_16x16x32_bf16 %s, %s, %s, %s" %
                      (ar(ACC(j, nt)), vr(A(p, slot, s)), vr(B(buf, s, nt)), ar(ACC(j, nt))))
                    if idx in side:
                        put(side[idx])
                    idx += 1
    emit("; ---- epilogue")
    vm.wait_all()
    I("s_nop 7")
    I("s_nop 7")
    I("v_and_b32 v8, 63, v0")
    I("v_lshlrev_b32 v9, 4, v8")
    I("v_add_u32 v12, s%d, v9" % S_LDS)
    for j in range(8):
        for nt in range(2):
            I("ds_write_b128 v12, %s offset:%d" % (ar(ACC(j, nt)), (j * 2 + nt) * 1024))
    I("s_waitcnt lgkmcnt(0)")
    I("s_barrier")
    I("s_lshl_b32 s%d, s%d, 12" % (S_TMP, S_WV))
    I("v_add_u32 v13, s%d, v9" % S_TMP)
    def P(w, blk):
        return 16 + (w * 4 + blk) * 4
    for w in range(4):
        for blk in range(4):
            I("ds_read_b128 %s, v13 offset:%d" % (vr(P(w, blk)), w * 16384 + blk * 1024))
    I("v_and_b32 v10, 15, v8")
    I("v_lshrrev_b32 v11, 4, v8")
    I("s_lshl_b32 s%d, s%d, 6" % (S_TMP, S_NT))
    I("v_lshlrev_b32 v14, 1, v10")
    I("buffer_load_ushort v80, v14, s[%d:%d], s%d offen" % (SRD_B, SRD_B + 3, S_TMP))
    I("buffer_load_ushort v81, v14, s[%d:%d], s%d offen offset:32" % (SRD_B, SRD_B + 3, S_TMP))
    I("s_waitcnt vmcnt(0) lgkmcnt(0)")
    I("v_lshlrev_b32 v80, 16, v80")
    I("v_lshlrev_b32 v81, 16, v81")
    for blk in range(4):
        nt = blk % 2
        for i in range(4):
            r = P(0, blk) + i
            I("v_add_f32 v%d, v%d, v%d" % (r, r, P(1, blk) + i))
            I("v_add_f32 v%d, v%d, v%d" % (P(2, blk) + i, P(2, blk) + i, P(3, blk) + i))
            I("v_add_f32 v%d, v%d, v%d" % (r, r, P(2, blk) + i))
            I("v_add_f32 v%d, v%d, v%d" % (r, r, 80 + nt))
    I("v_lshlrev_b32 v14, 15, v11")
    I("v_lshl_add_u32 v14, v10, 2, v14")
    I("s_lshl_b32 s%d, s%d, 11" % (S_TMP, S_B))
    I("s_add_u32 s%d, s%d, s%d" % (S_TMP, S_TMP, S_L0))
    I("s_lshl_b32 s%d, s%d, 1" % (S_TMP2, S_WV))
    I("s_add_u32 s%d, s%d, s%d" % (S_TMP, S_TMP, S_TMP2))
    I("s_lshl_b32 s%d, s%d, 10" % (S_TMP, S_TMP))
    I("s_lshl_b32 s%d, s%d, 7" % (S_TMP2, S_NT))
    I("s_add_u32 s%d, s%d, s%d" % (S_YB, S_TMP, S_TMP2))
    for blk in range(4):
        jp, nt = blk // 2, blk % 2
        for i in range(4):
            I("s_add_u32 s%d, s%d, %d" % (S_TMP, S_YB, (8 * i + jp) * 1024))
            I("buffer_store_dword v%d, v14, s[%d:%d], s%d offen offset:%d" % (P(0, blk) + i, SRD_WS, SRD_WS + 3, S_TMP, 64 * nt))
    I("s_lshl_b32 s%d, s%d, 1" % (S_TMP2, S_WV))
    I("v_lshlrev_b32 v15, 5, v11")
    I("v_add_u32 v15, s%d, v15" % S_TMP2)
    def M(jp, i):
        return 82 + jp * 4 + i
    for jp in range(2):
        for i in range(4):
            I("v_add_u32 v90, %d, v15" % (8 * i + jp))
            I("v_cmp_gt_u32 vcc, s%d, v90" % S_NVALID)
            I("s_nop 1")
            I("v_cndmask_b32 v%d, 0, 1.0, vcc" % M(jp, i))
    I("v_mov_b32 v91, 0")
    I("v_mov_b32 v92, 0")
    I("v_mov_b32 v93, 0")
    for jp in range(2):
        for i in range(4):
            I("v_add_f32 v91, v91, v%d" % M(jp, i))
            for nt in range(2):
                I("v_fmac_f32 v%d, v%d, v%d" % (92 + nt, P(0, jp * 2 + nt) + i, M(jp, i)))
    def allreduce_q(regs):
        for swap in ("v_permlane32_swap_b32", "v_permlane16_swap_b32"):
            for k, r in enumerate(regs):
                I("v_mov_b32 v%d, v%d" % (120 + k, r))
            I("s_nop 1")
            for k, r in enumerate(regs):
                I("%s v%d, v%d" % (swap, r, 120 + k))
            I("s_nop 1")
            for k, r in enumerate(regs):
                I("v_add_f32 v%d, v%d, v%d" % (r, r, 120 + k))
    allreduce_q([91, 92, 93])
    I("v_rcp_f32 v94, v91")
    I("s_nop 0")
    I("v_mul_f32 v92, v92, v94")
    I("v_mul_f32 v93, v93, v94")
    I("v_mov_b32 v95, 0")
    I("v_mov_b32 v96, 0")
    for jp in range(2):
        for i in range(4):
            for nt in range(2):
                I("v_sub_f32 v97, v%d, v%d" % (P(0, jp * 2 + nt) + i, 92 + nt))
                I("v_mul_f32 v97, v97, v%d" % M(jp, i))
                I("v_fmac_f32 v%d, v97, v97" % (95 + nt))
    allreduce_q([95, 96])
    I("s_lshl_b32 s%d, s%d, 9" % (S_TMP, S_WV))
    I("v_lshlrev_b32 v14, 4, v10")
    I("v_add_u32 v14, s%d, v14" % S_TMP)
    I("v_add_u32 v14, %d, v14" % LDS_STATS)
    I("s_mov_b64 exec, 0xffff")
    for nt in range(2):
        I("v_mov_b32 v100, v%d" % (92 + nt))
        I("v_mov_b32 v101, v%d" % (95 + nt))
        I("v_mov_b32 v102, v91")
        I("v_mov_b32 v103, 0")
        I("ds_write_b128 v14, v[100:103] offset:%d" % (nt * 256))
    I("s_mov_b64 exec, -1")
    I("s_waitcnt lgkmcnt(0)")
    I("s_barrier")
    I("s_cmp_lg_u32 s%d, 0" % S_WV)
    I("s_cbranch_scc1 KA_END")
    I("s_mov_b32 exec_lo, -1")
    I("s_mov_b32 exec_hi, 0")
    I("v_lshlrev_b32 v14, 4, v8")
    I("v_add_u32 v14, %d, v14" % LDS_STATS)
    for w in range(4):
        I("ds_read_b128 v[%d:%d], v14 offset:%d" % (100 + 4 * w, 103 + 4 * w, w * 512))
    I("s_waitcnt lgkmcnt(0)")
    I("v_add_f32 v90, v102, v106")
    I("v_add_f32 v91, v110, v114")
    I("v_add_f32 v90, v90, v91")
    I("v_mul_f32 v91, v100, v102")
    for w in range(1, 4):
        I("v_fmac_f32 v91, v%d, v%d" % (100 + 4 * w, 102 + 4 * w))
    I("v_rcp_f32 v92, v90")
    I("s_nop 0")
    I("v_mul_f32 v91, v91, v92")
    I("v_add_f32 v93, v101, v105")
    I("v_add_f32 v94, v109, v113")
    I("v_add_f32 v93, v93, v94")
    for w in range(4):
        I("v_sub_f32 v94, v%d, v91" % (100 + 4 * w))
        I("v_mul_f32 v95, v94, v%d" % (102 + 4 * w))
        I("v_fmac_f32 v93, v94, v95")
    I("s_lshl_b32 s%d, s%d, 4" % (S_TMP, S_B))
    I("s_add_u32 s%d, s%d, s%d" % (S_TMP, S_TMP, S_MT))
    I("s_lshl_b32 s%d, s%d, 10" % (S_TMP, S_TMP))
    I("s_lshl_b32 s%d, s%d, 7" % (S_TMP2, S_NT))
    I("s_add_u32 s%d, s%d, s%d" % (S_TMP, S_TMP, S_TMP2))
    I("s_add_u32 s%d, s%d, %d" % (S_TMP, S_TMP, STATS_OFF))
    I("v_lshlrev_b32 v14, 2, v8")
    I("buffer_store_dword v91, v14, s[%d:%d], s%d offen" % (SRD_WS, SRD_WS + 3, S_TMP))
    I("s_add_u32 s%d, s%d, 32768" % (S_TMP, S_TMP))
    I("buffer_store_dword v93, v14, s[%d:%d], s%d offen" % (SRD_WS, SRD_WS + 3, S_TMP))
    emit("KA_END:")
    I("s_endpgm")

def f32hex(x):
    import struct
    return "0x%08x" % struct.unpack("<I", struct.pack("<f", x))[0]

def gen_kernel_b():
    emit(".globl %s" % KB)
    emit(".p2align 8")
    emit(".type %s,@function" % KB)
    emit("%s:" % KB)
    I("s_cmp_ge_u32 s2, 250")
    I("s_cbranch_scc1 KB_END")
    I("s_load_dwordx4 s[4:7], s[0:1], 24")
    I("s_load_dwordx2 s[8:9], s[0:1], 40")
    I("s_load_dwordx2 s[10:11], s[0:1], 56")
    I("v_and_b32 v1, 127, v0")
    I("v_lshrrev_b32 v2, 7, v0")
    I("s_nop 0")
    I("v_readfirstlane_b32 s3, v2")
    I("s_cmp_ge_u32 s2, 125")
    I("s_cselect_b32 s30, 1, 0")
    I("s_mul_i32 s31, s30, 125")
    I("s_sub_u32 s31, s2, s31")
    I("s_lshl_b32 s31, s31, 4")
    I("s_add_u32 s32, s31, s3")
    I("s_waitcnt lgkmcnt(0)")
    for srd, ptr, nb in ((12, 4, 512), (16, 6, 512), (20, 8, OUT_BYTES), (24, 10, WS_USED)):
        I("s_mov_b32 s%d, s%d" % (srd, ptr))
        I("s_and_b32 s%d, s%d, 0xffff" % (srd + 1, ptr + 1))
        I("s_mov_b32 s%d, %d" % (srd + 2, nb))
        I("s_mov_b32 s%d, 0x00020000" % (srd + 3))
    I("v_lshlrev_b32 v3, 3, v1")
    I("v_lshlrev_b32 v4, 2, v1")
    I("s_lshl_b32 s33, s30, 11")
    I("s_add_u32 s33, s33, s32")
    I("s_lshl_b32 s33, s33, 10")
    for k in range(8):
        if k > 0:
            I("s_add_u32 s34, s33, %d" % (2048 * k))
        I("buffer_load_dwordx2 v[%d:%d], v3, s[24:27], s%d offen" % (16 + 2 * k, 17 + 2 * k, 33 if k == 0 else 34))
    I("s_lshl_b32 s35, s30, 14")
    I("s_add_u32 s35, s35, %d" % STATS_OFF)
    for arr in range(2):
        for k in range(16):
            if k % 4 == 0:
                I("s_add_u32 s36, s35, %d" % (arr * 32768 + (k // 4) * 4096))
            base = 32 + arr * 32 + 2 * k
            I("buffer_load_dwordx2 v[%d:%d], v3, s[24:27], s36 offen offset:%d" % (base, base + 1, 1024 * (k % 4)))
    I("buffer_load_dword v96, v4, s[12:15], 0 offen")
    I("buffer_load_dword v97, v4, s[16:19], 0 offen")
    I("s_waitcnt vmcnt(0)")
    inv_l = f32hex(1.0 / 1985.0)
    I("v_mov_b32 v110, %s" % inv_l)
    I("v_mov_b32 v111, 0x43000000")
    I("v_mov_b32 v112, 0x42820000")
    I("v_mov_b32 v113, %s" % f32hex(1e-5))
    c0 = -2.0 * 1.4426950408889634 * 0.7978845608028654
    c1 = c0 * 0.044715
    I("v_mov_b32 v114, %s" % f32hex(c0))
    I("v_mov_b32 v115, %s" % f32hex(c1))
    for ch in range(2):
        m = lambda k: 32 + 2 * k + ch
        q = lambda k: 64 + 2 * k + ch
        I("v_add_f32 v98, v%d, v%d" % (m(0), m(1)))
        for k in range(2, 15):
            I("v_add_f32 v98, v98, v%d" % m(k))
        I("v_mul_f32 v98, v98, v111")
        I("v_fmac_f32 v98, v%d, v112" % m(15))
        I("v_mul_f32 v98, v98, v110")
        I("v_add_f32 v99, v%d, v%d" % (q(0), q(1)))
        for k in range(2, 16):
            I("v_add_f32 v99, v99, v%d" % q(k))
        I("v_mov_b32 v100, 0")
        for k in range(15):
            I("v_sub_f32 v101, v%d, v98" % m(k))
            I("v_fmac_f32 v100, v101, v101")
        I("v_fmac_f32 v99, v100, v111")
        I("v_sub_f32 v101, v%d, v98" % m(15))
        I("v_mul_f32 v101, v101, v101")
        I("v_fmac_f32 v99, v101, v112")
        I("v_mul_f32 v99, v99, v110")
        I("v_add_f32 v99, v99, v113")
        I("v_rsq_f32 v99, v99")
        I("s_nop 0")
        if ch == 0:
            I("v_lshlrev_b32 v100, 16, v96")
            I("v_lshlrev_b32 v101, 16, v97")
        else:
            I("v_and_b32 v100, 0xffff0000, v96")
            I("v_and_b32 v101, 0xffff0000, v97")
        I("v_mul_f32 v%d, v99, v100" % (104 + ch))
        I("v_fma_f32 v%d, -v98, v%d, v101" % (106 + ch, 104 + ch))
    I("s_mul_i32 s37, s30, 1985")
    I("s_add_u32 s37, s37, s32")
    I("s_lshl_b32 s37, s37, 9")
    for k in range(8):
        I("s_add_u32 s38, s32, %d" % (2 * k))
        I("s_cmp_ge_u32 s38, 1985")
        I("s_cbranch_scc1 KB_END")
        for ch in range(2):
            y = 16 + 2 * k + ch
            if DEBUG_COPY_Y:
                I("v_mov_b32 v%d, v%d" % (116 + ch, y))
                continue
            I("v_fma_f32 v116, v%d, v%d, v%d" % (y, 104 + ch, 106 + ch))
            I("v_mul_f32 v117, v116, v116")
            I("v_fma_f32 v117, v117, v115, v114")
            I("v_mul_f32 v117, v117, v116")
            I("v_exp_f32 v117, v117")
            I("s_nop 0")
            I("v_add_f32 v117, 1.0, v117")
            I("v_rcp_f32 v117, v117")
            I("s_nop 0")
            I("v_mul_f32 v%d, v116, v117" % (118 + ch))
        if DEBUG_COPY_Y:
            I("v_cvt_pk_bf16_f32 v120, v116, v117")
        else:
            I("v_cvt_pk_bf16_f32 v120, v118, v119")
        I("s_add_u32 s39, s37, %d" % (1024 * k))
        I("buffer_store_dword v120, v4, s[20:23], s39 offen")
    emit("KB_END:")
    I("s_endpgm")

def header():
    emit("; Kernarg layout for this problem (64 bytes, ptrs only, base s[0:1]):")
    emit("; @launch kernel=%s grid=(256,1,1) block=(256,1,1) lds=%d" % (KA, LDS_BYTES))
    emit("; @launch kernel=%s grid=(250,1,1) block=(256,1,1) lds=0" % KB)
    emit('.amdgcn_target "amdgcn-amd-amdhsa--gfx950"')
    emit(".text")

def descriptors():
    emit('.section .rodata,"a"')
    for name, nv, acc in ((KA, ACC_OFF + 64, ACC_OFF), (KB, 128, 128)):
        emit(".p2align 6")
        emit(".amdhsa_kernel %s" % name)
        emit("  .amdhsa_next_free_vgpr %d" % nv)
        emit("  .amdhsa_next_free_sgpr 64")
        emit("  .amdhsa_accum_offset %d" % acc)
        emit("  .amdhsa_group_segment_fixed_size 0")
        emit("  .amdhsa_kernarg_size 64")
        emit("  .amdhsa_user_sgpr_count 2")
        emit("  .amdhsa_user_sgpr_kernarg_segment_ptr 1")
        emit("  .amdhsa_system_sgpr_workgroup_id_x 1")
        emit(".end_amdhsa_kernel")

if __name__ == "__main__":
    header()
    gen_kernel_a()
    gen_kernel_b()
    descriptors()
    open(sys.argv[1] if len(sys.argv) > 1 else "standalone__self_sup_conv_stem_hubert__speech.s", "w").write("\n".join(out) + "\n")
```

```python
import sys

STAMP = bool(int(__import__("os").environ.get("STAMP", "0")))
STAMP_OFF = 8 << 20
DEBUG_COPY_Y = bool(int(__import__("os").environ.get("DEBUG_COPY_Y", "0")))

KA = "standalone__self_sup_conv_stem_hubert__speech_kernel"
KB = "hubert_norm_kernel"

R = 4
LDS_STATS = 65536
LDS_BYTES = 65536 + 2048

X_BYTES = 2 * 4000 * 256 * 2
W_BYTES = 31 * 256 * 256 * 2
Y_ROWS_PAD = 2048
Y_BYTES = 2 * Y_ROWS_PAD * 256 * 4
STATS_OFF = Y_BYTES
WS_USED = (9 << 20) if STAMP else (Y_BYTES + 65536)
OUT_BYTES = 2 * 1985 * 256 * 2

out = []
def emit(s=""):
    out.append(s)
def I(s):
    out.append("    " + s)

V_XOFF = 1
V_WOFF = [2, 3, 4, 5]
V_TR = [6, 7]
A_BASE = 16
B_BASE = 144
NUM_VGPR = 176
ACC_OFF = 176
def A(set_, slot, s):
    b = A_BASE + set_ * 64 + slot * 8 + 4 * s
    return b
def B(buf, s, nt):
    return B_BASE + buf * 16 + (s * 2 + nt) * 4
def ACC(j, nt):
    return (j * 2 + nt) * 4
def vr(b, n=4):
    return "v[%d:%d]" % (b, b + n - 1)
def ar(b, n=4):
    return "a[%d:%d]" % (b, b + n - 1)

S_WV = 3
S_X = 4
S_BIAS = 8
S_WS = 10
SRD_X = 12
SRD_W = 16
SRD_WS = 20
SRD_B = 24
S_LDS = 28
S_NT = 29
S_XB = 30
S_W0 = 36
S_WT = 37
S_B = 38
S_L0 = 39
S_MT = 40
S_TMP = 41
S_TMP2 = 42
S_NVALID = 43
S_EXEC_SAVE = 44
S_MASK = 46
S_YB = 48
S_HI = 56

class VmQ:
    def __init__(self):
        self.q = []
    def issue(self, tag):
        self.q.append(tag)
    def wait_for(self, tag):
        idx = None
        for i, t in enumerate(self.q):
            if t == tag:
                idx = i
        if idx is None:
            return
        n = len(self.q) - 1 - idx
        assert n <= 63
        I("s_waitcnt vmcnt(%d)" % n)
        self.q = self.q[idx + 1:]
    def wait_all(self):
        I("s_waitcnt vmcnt(0)")
        self.q = []

_stamp_idx = [0]
def stamp():
    if not STAMP:
        return
    I("s_memtime s[60:61]")
    I("s_waitcnt lgkmcnt(0)")
    I("v_writelane_b32 v15, s60, %d" % _stamp_idx[0])
    _stamp_idx[0] += 1

def xoff(g, p, s):
    tot = (2 * g + p) * 512 + 64 * s
    return S_XB + tot // 4096, tot % 4096

def tap_of(sig):
    return 2 * sig if sig < 16 else 2 * (sig - 16) + 1

def gen_kernel_a():
    vm = VmQ()
    emit(".globl %s" % KA)
    emit(".p2align 8")
    emit(".type %s,@function" % KA)
    emit("%s:" % KA)
    I("s_cmp_ge_u32 s2, 256")
    I("s_cbranch_scc1 KA_END")
    I("s_load_dwordx4 s[4:7], s[0:1], 0")
    I("s_load_dwordx2 s[8:9], s[0:1], 16")
    I("s_load_dwordx2 s[10:11], s[0:1], 56")
    I("v_and_b32 v8, 63, v0")
    I("v_lshrrev_b32 v9, 6, v0")
    I("v_and_b32 v10, 15, v8")
    I("v_lshrrev_b32 v11, 4, v8")
    I("v_readfirstlane_b32 s%d, v9" % S_WV)
    I("v_lshlrev_b32 v%d, 13, v10" % V_XOFF)
    I("v_lshl_add_u32 v%d, v11, 4, v%d" % (V_XOFF, V_XOFF))
    I("v_lshrrev_b32 v12, 2, v8")
    I("v_and_b32 v13, 3, v8")
    I("v_lshrrev_b32 v14, 5, v8")
    I("v_lshlrev_b32 v14, 1, v14")
    I("v_xor_b32 v13, v13, v14")
    I("v_lshlrev_b32 v%d, 9, v12" % V_WOFF[0])
    I("v_lshl_add_u32 v%d, v13, 4, v%d" % (V_WOFF[0], V_WOFF[0]))
    for c in range(1, 4):
        I("v_add_u32 v%d, %d, v%d" % (V_WOFF[c], 7168 * c, V_WOFF[0]))
    I("v_lshrrev_b32 v12, 2, v10")
    I("v_lshl_add_u32 v12, v11, 3, v12")
    I("v_lshlrev_b32 v12, 6, v12")
    I("v_and_b32 v13, 3, v10")
    I("v_lshl_add_u32 v12, v13, 3, v12")
    I("v_and_b32 v13, 1, v11")
    I("v_lshlrev_b32 v13, 5, v13")
    I("s_lshl_b32 s%d, s%d, 14" % (S_LDS, S_WV))
    I("v_add_u32 v%d, v12, v13" % V_TR[0])
    I("v_add_u32 v%d, s%d, v%d" % (V_TR[0], S_LDS, V_TR[0]))
    I("v_xor_b32 v%d, 32, v%d" % (V_TR[1], V_TR[0]))
    I("s_lshr_b32 s%d, s2, 5" % S_NT)
    I("s_and_b32 s%d, s2, 31" % S_TMP)
    I("s_lshr_b32 s%d, s%d, 4" % (S_B, S_TMP))
    I("s_and_b32 s%d, s%d, 15" % (S_MT, S_TMP))
    I("s_lshl_b32 s%d, s%d, 7" % (S_L0, S_MT))
    I("s_waitcnt lgkmcnt(0)")
    for srd, ptr, nb in ((SRD_X, 4, X_BYTES), (SRD_W, 6, W_BYTES), (SRD_WS, 10, WS_USED), (SRD_B, 8, 512)):
        I("s_mov_b32 s%d, s%d" % (srd, ptr))
        I("s_and_b32 s%d, s%d, 0xffff" % (srd + 1, ptr + 1))
        I("s_mov_b32 s%d, %d" % (srd + 2, nb))
        I("s_mov_b32 s%d, 0x00020000" % (srd + 3))
    I("s_mul_i32 s%d, s%d, 2048000" % (S_TMP, S_B))
    I("s_lshl_b32 s%d, s%d, 10" % (S_TMP2, S_L0))
    I("s_add_u32 s%d, s%d, s%d" % (S_TMP, S_TMP, S_TMP2))
    I("s_lshl_b32 s%d, s%d, 7" % (S_TMP2, S_WV))
    I("s_add_u32 s%d, s%d, s%d" % (S_XB, S_TMP, S_TMP2))
    for i in range(1, 6):
        I("s_add_u32 s%d, s%d, %d" % (S_XB + i, S_XB, 4096 * i))
    I("s_lshl_b32 s%d, s%d, 15" % (S_TMP, S_WV))
    I("s_lshl_b32 s%d, s%d, 6" % (S_TMP2, S_NT))
    I("s_add_u32 s%d, s%d, s%d" % (S_W0, S_TMP, S_TMP2))
    I("s_mov_b32 s%d, 0x80008000" % S_MASK)
    I("s_mov_b32 s%d, 0x80008000" % (S_MASK + 1))
    I("s_sub_u32 s%d, 1985, s%d" % (S_NVALID, S_L0))
    I("s_min_u32 s%d, s%d, 128" % (S_NVALID, S_NVALID))
    stamp()
    for i in range(64):
        I("v_accvgpr_write_b32 a%d, 0" % i)

    def dma(sig):
        st = sig % R
        L = []
        L.append(("s", "s_add_u32 s%d, s%d, %d" % (S_WT, S_W0, tap_of(sig) * 131072)))
        L.append(("s", "s_add_u32 m0, s%d, %d" % (S_LDS, st * 4096)))
        L.append(("s", "s_nop 0"))
        for c in range(4):
            L.append(("vm:dma%d" % sig,
                      "buffer_load_dwordx4 v%d, s[%d:%d], s%d offen offset:%d lds" % (V_WOFF[c], SRD_W, SRD_W + 3, S_WT, 1024 * c)))
        return L

    def xload(set_, slot, g, p, tag):
        L = []
        for s in range(2):
            sg, imm = xoff(g, p, s)
            L.append(("vm:" + tag, "buffer_load_dwordx4 %s, v%d, s[%d:%d], s%d offen offset:%d" %
                      (vr(A(set_, slot, s)), V_XOFF, SRD_X, SRD_X + 3, sg, imm)))
        return L

    def trreads(sig):
        buf = sig % 2
        st = sig % R
        L = []
        for s in range(2):
            for nt in range(2):
                for jh in range(2):
                    b = B(buf, s, nt) + 2 * jh
                    L.append(("ds", "ds_read_b64_tr_b16 %s, v%d offset:%d" % (vr(b, 2), V_TR[nt], st * 4096 + (32 * s + 4 * jh) * 64)))
        return L

    def put(items):
        for kind, txt in items:
            if kind.startswith("vm:"):
                vm.issue(kind[3:])
            elif kind.startswith("wait:"):
                vm.wait_for(kind[5:])
                continue
            I(txt)

    for sig in range(R):
        put(dma(sig))
    stamp()
    for f in range(8):
        put(xload(0, f, f, 0, "xa0"))
    stamp()
    vm.wait_for("dma0")
    stamp()
    put(trreads(0))
    if STAMP:
        vm.wait_for("xa0")
        stamp()
    NSTEP = 31
    for sig in range(NSTEP):
        p = 0 if sig < 16 else 1
        u = sig if sig < 16 else sig - 16
        umax = 15 if p == 0 else 14
        buf = sig % 2
        emit("; ---- step %d (p=%d u=%d tap=%d)" % (sig, p, u, tap_of(sig)))
        side = {}
        def at(k, items):
            side.setdefault(k, []).extend(items)
        if sig == 0:
            pre = [("wait:xa0", "")]
        elif sig == 16:
            pre = [("wait:xa1", "")]
        else:
            pre = []
        g_new = u + 8
        if g_new <= umax + 7:
            slot = u % 8
            for k in range(8):
                reg = A(p, slot, 0) + k
                at(3 + k // 2, [("v", "v_mov_b32_dpp v%d, v%d row_shl:1 row_mask:0xf bank_mask:0xf" % (reg, reg))])
            L = [("s", "s_mov_b64 exec, s[%d:%d]" % (S_MASK, S_MASK + 1))]
            L += xload(p, slot, g_new, p, "bnd%d" % sig)
            L += [("s", "s_mov_b64 exec, -1")]
            at(7, L)
        if u >= 1:
            at(27, [("wait:bnd%d" % (sig - 1), "")])
        if sig + R < NSTEP:
            at(9, dma(sig + R))
        if sig + 1 < NSTEP:
            L = [("wait:dma%d" % (sig + 1), "")] + trreads(sig + 1)
            for k, it in enumerate(L):
                at(14 + k // 2, [it])
        if sig < 8:
            at(22, xload(1, sig, sig, 1, "xa1"))
        I("s_waitcnt lgkmcnt(0)")
        put(pre)
        stamp()
        idx = 0
        for j in range(8):
            slot = (u + j) % 8
            for s in range(2):
                for nt in range(2):
                    I("v_mfma_f32_16x16x32_bf16 %s, %s, %s, %s" %
                      (ar(ACC(j, nt)), vr(A(p, slot, s)), vr(B(buf, s, nt)), ar(ACC(j, nt))))
                    if idx in side:
                        put(side[idx])
                    idx += 1
    emit("; ---- epilogue")
    stamp()
    vm.wait_all()
    stamp()
    I("s_nop 7")
    I("s_nop 7")
    I("v_and_b32 v8, 63, v0")
    I("v_lshlrev_b32 v9, 4, v8")
    I("v_add_u32 v12, s%d, v9" % S_LDS)
    for j in range(8):
        for nt in range(2):
            I("ds_write_b128 v12, %s offset:%d" % (ar(ACC(j, nt)), (j * 2 + nt) * 1024))
    I("s_waitcnt lgkmcnt(0)")
    I("s_barrier")
    I("s_lshl_b32 s%d, s%d, 12" % (S_TMP, S_WV))
    I("v_add_u32 v13, s%d, v9" % S_TMP)
    def P(w, blk):
        return 16 + (w * 4 + blk) * 4
    for w in range(4):
        for blk in range(4):
            I("ds_read_b128 %s, v13 offset:%d" % (vr(P(w, blk)), w * 16384 + blk * 1024))
    I("v_and_b32 v10, 15, v8")
    I("v_lshrrev_b32 v11, 4, v8")
    I("s_lshl_b32 s%d, s%d, 6" % (S_TMP, S_NT))
    I("v_lshlrev_b32 v14, 1, v10")
    I("buffer_load_ushort v80, v14, s[%d:%d], s%d offen" % (SRD_B, SRD_B + 3, S_TMP))
    I("buffer_load_ushort v81, v14, s[%d:%d], s%d offen offset:32" % (SRD_B, SRD_B + 3, S_TMP))
    I("s_waitcnt vmcnt(0) lgkmcnt(0)")
    I("v_lshlrev_b32 v80, 16, v80")
    I("v_lshlrev_b32 v81, 16, v81")
    for blk in range(4):
        nt = blk % 2
        for i in range(4):
            r = P(0, blk) + i
            I("v_add_f32 v%d, v%d, v%d" % (r, r, P(1, blk) + i))
            I("v_add_f32 v%d, v%d, v%d" % (P(2, blk) + i, P(2, blk) + i, P(3, blk) + i))
            I("v_add_f32 v%d, v%d, v%d" % (r, r, P(2, blk) + i))
            I("v_add_f32 v%d, v%d, v%d" % (r, r, 80 + nt))
    I("v_lshlrev_b32 v14, 15, v11")
    I("v_lshl_add_u32 v14, v10, 2, v14")
    I("s_lshl_b32 s%d, s%d, 11" % (S_TMP, S_B))
    I("s_add_u32 s%d, s%d, s%d" % (S_TMP, S_TMP, S_L0))
    I("s_lshl_b32 s%d, s%d, 1" % (S_TMP2, S_WV))
    I("s_add_u32 s%d, s%d, s%d" % (S_TMP, S_TMP, S_TMP2))
    I("s_lshl_b32 s%d, s%d, 10" % (S_TMP, S_TMP))
    I("s_lshl_b32 s%d, s%d, 7" % (S_TMP2, S_NT))
    I("s_add_u32 s%d, s%d, s%d" % (S_YB, S_TMP, S_TMP2))
    for blk in range(4):
        jp, nt = blk // 2, blk % 2
        for i in range(4):
            I("s_add_u32 s%d, s%d, %d" % (S_TMP, S_YB, (8 * i + jp) * 1024))
            I("buffer_store_dword v%d, v14, s[%d:%d], s%d offen offset:%d" % (P(0, blk) + i, SRD_WS, SRD_WS + 3, S_TMP, 64 * nt))
    if STAMP:
        stamp()
        I("s_lshl_b32 s%d, s2, 10" % S_TMP)
        I("s_lshl_b32 s%d, s%d, 8" % (S_TMP2, S_WV))
        I("s_add_u32 s%d, s%d, s%d" % (S_TMP, S_TMP, S_TMP2))
        I("s_add_u32 s%d, s%d, %d" % (S_TMP, S_TMP, STAMP_OFF))
        I("v_lshlrev_b32 v90, 2, v8")
        I("buffer_store_dword v15, v90, s[%d:%d], s%d offen" % (SRD_WS, SRD_WS + 3, S_TMP))
    I("s_lshl_b32 s%d, s%d, 1" % (S_TMP2, S_WV))
    I("v_lshlrev_b32 v15, 5, v11")
    I("v_add_u32 v15, s%d, v15" % S_TMP2)
    def M(jp, i):
        return 82 + jp * 4 + i
    for jp in range(2):
        for i in range(4):
            I("v_add_u32 v90, %d, v15" % (8 * i + jp))
            I("v_cmp_gt_u32 vcc, s%d, v90" % S_NVALID)
            I("s_nop 1")
            I("v_cndmask_b32 v%d, 0, 1.0, vcc" % M(jp, i))
    I("v_mov_b32 v91, 0")
    I("v_mov_b32 v92, 0")
    I("v_mov_b32 v93, 0")
    for jp in range(2):
        for i in range(4):
            I("v_add_f32 v91, v91, v%d" % M(jp, i))
            for nt in range(2):
                I("v_fmac_f32 v%d, v%d, v%d" % (92 + nt, P(0, jp * 2 + nt) + i, M(jp, i)))
    def allreduce_q(regs):
        for swap in ("v_permlane32_swap_b32", "v_permlane16_swap_b32"):
            for k, r in enumerate(regs):
                I("v_mov_b32 v%d, v%d" % (120 + k, r))
            I("s_nop 1")
            for k, r in enumerate(regs):
                I("%s v%d, v%d" % (swap, r, 120 + k))
            I("s_nop 1")
            for k, r in enumerate(regs):
                I("v_add_f32 v%d, v%d, v%d" % (r, r, 120 + k))
    allreduce_q([91, 92, 93])
    I("v_rcp_f32 v94, v91")
    I("s_nop 0")
    I("v_mul_f32 v92, v92, v94")
    I("v_mul_f32 v93, v93, v94")
    I("v_mov_b32 v95, 0")
    I("v_mov_b32 v96, 0")
    for jp in range(2):
        for i in range(4):
            for nt in range(2):
                I("v_sub_f32 v97, v%d, v%d" % (P(0, jp * 2 + nt) + i, 92 + nt))
                I("v_mul_f32 v97, v97, v%d" % M(jp, i))
                I("v_fmac_f32 v%d, v97, v97" % (95 + nt))
    allreduce_q([95, 96])
    I("s_lshl_b32 s%d, s%d, 9" % (S_TMP, S_WV))
    I("v_lshlrev_b32 v14, 4, v10")
    I("v_add_u32 v14, s%d, v14" % S_TMP)
    I("v_add_u32 v14, %d, v14" % LDS_STATS)
    I("s_mov_b64 exec, 0xffff")
    for nt in range(2):
        I("v_mov_b32 v100, v%d" % (92 + nt))
        I("v_mov_b32 v101, v%d" % (95 + nt))
        I("v_mov_b32 v102, v91")
        I("v_mov_b32 v103, 0")
        I("ds_write_b128 v14, v[100:103] offset:%d" % (nt * 256))
    I("s_mov_b64 exec, -1")
    I("s_waitcnt lgkmcnt(0)")
    I("s_barrier")
    I("s_cmp_lg_u32 s%d, 0" % S_WV)
    I("s_cbranch_scc1 KA_END")
    I("s_mov_b32 exec_lo, -1")
    I("s_mov_b32 exec_hi, 0")
    I("v_lshlrev_b32 v14, 4, v8")
    I("v_add_u32 v14, %d, v14" % LDS_STATS)
    for w in range(4):
        I("ds_read_b128 v[%d:%d], v14 offset:%d" % (100 + 4 * w, 103 + 4 * w, w * 512))
    I("s_waitcnt lgkmcnt(0)")
    I("v_add_f32 v90, v102, v106")
    I("v_add_f32 v91, v110, v114")
    I("v_add_f32 v90, v90, v91")
    I("v_mul_f32 v91, v100, v102")
    for w in range(1, 4):
        I("v_fmac_f32 v91, v%d, v%d" % (100 + 4 * w, 102 + 4 * w))
    I("v_rcp_f32 v92, v90")
    I("s_nop 0")
    I("v_mul_f32 v91, v91, v92")
    I("v_add_f32 v93, v101, v105")
    I("v_add_f32 v94, v109, v113")
    I("v_add_f32 v93, v93, v94")
    for w in range(4):
        I("v_sub_f32 v94, v%d, v91" % (100 + 4 * w))
        I("v_mul_f32 v95, v94, v%d" % (102 + 4 * w))
        I("v_fmac_f32 v93, v94, v95")
    I("s_lshl_b32 s%d, s%d, 4" % (S_TMP, S_B))
    I("s_add_u32 s%d, s%d, s%d" % (S_TMP, S_TMP, S_MT))
    I("s_lshl_b32 s%d, s%d, 10" % (S_TMP, S_TMP))
    I("s_lshl_b32 s%d, s%d, 7" % (S_TMP2, S_NT))
    I("s_add_u32 s%d, s%d, s%d" % (S_TMP, S_TMP, S_TMP2))
    I("s_add_u32 s%d, s%d, %d" % (S_TMP, S_TMP, STATS_OFF))
    I("v_lshlrev_b32 v14, 2, v8")
    I("buffer_store_dword v91, v14, s[%d:%d], s%d offen" % (SRD_WS, SRD_WS + 3, S_TMP))
    I("s_add_u32 s%d, s%d, 32768" % (S_TMP, S_TMP))
    I("buffer_store_dword v93, v14, s[%d:%d], s%d offen" % (SRD_WS, SRD_WS + 3, S_TMP))
    emit("KA_END:")
    I("s_endpgm")

def f32hex(x):
    import struct
    return "0x%08x" % struct.unpack("<I", struct.pack("<f", x))[0]

def gen_kernel_b():
    emit(".globl %s" % KB)
    emit(".p2align 8")
    emit(".type %s,@function" % KB)
    emit("%s:" % KB)
    I("s_cmp_ge_u32 s2, 250")
    I("s_cbranch_scc1 KB_END")
    I("s_load_dwordx4 s[4:7], s[0:1], 24")
    I("s_load_dwordx2 s[8:9], s[0:1], 40")
    I("s_load_dwordx2 s[10:11], s[0:1], 56")
    I("v_and_b32 v1, 127, v0")
    I("v_lshrrev_b32 v2, 7, v0")
    I("s_nop 0")
    I("v_readfirstlane_b32 s3, v2")
    I("s_cmp_ge_u32 s2, 125")
    I("s_cselect_b32 s30, 1, 0")
    I("s_mul_i32 s31, s30, 125")
    I("s_sub_u32 s31, s2, s31")
    I("s_lshl_b32 s31, s31, 4")
    I("s_add_u32 s32, s31, s3")
    I("s_waitcnt lgkmcnt(0)")
    for srd, ptr, nb in ((12, 4, 512), (16, 6, 512), (20, 8, OUT_BYTES), (24, 10, WS_USED)):
        I("s_mov_b32 s%d, s%d" % (srd, ptr))
        I("s_and_b32 s%d, s%d, 0xffff" % (srd + 1, ptr + 1))
        I("s_mov_b32 s%d, %d" % (srd + 2, nb))
        I("s_mov_b32 s%d, 0x00020000" % (srd + 3))
    I("v_lshlrev_b32 v3, 3, v1")
    I("v_lshlrev_b32 v4, 2, v1")
    I("s_lshl_b32 s33, s30, 11")
    I("s_add_u32 s33, s33, s32")
    I("s_lshl_b32 s33, s33, 10")
    for k in range(8):
        if k > 0:
            I("s_add_u32 s34, s33, %d" % (2048 * k))
        I("buffer_load_dwordx2 v[%d:%d], v3, s[24:27], s%d offen" % (16 + 2 * k, 17 + 2 * k, 33 if k == 0 else 34))
    I("s_lshl_b32 s35, s30, 14")
    I("s_add_u32 s35, s35, %d" % STATS_OFF)
    for arr in range(2):
        for k in range(16):
            if k % 4 == 0:
                I("s_add_u32 s36, s35, %d" % (arr * 32768 + (k // 4) * 4096))
            base = 32 + arr * 32 + 2 * k
            I("buffer_load_dwordx2 v[%d:%d], v3, s[24:27], s36 offen offset:%d" % (base, base + 1, 1024 * (k % 4)))
    I("buffer_load_dword v96, v4, s[12:15], 0 offen")
    I("buffer_load_dword v97, v4, s[16:19], 0 offen")
    I("s_waitcnt vmcnt(0)")
    inv_l = f32hex(1.0 / 1985.0)
    I("v_mov_b32 v110, %s" % inv_l)
    I("v_mov_b32 v111, 0x43000000")
    I("v_mov_b32 v112, 0x42820000")
    I("v_mov_b32 v113, %s" % f32hex(1e-5))
    c0 = -2.0 * 1.4426950408889634 * 0.7978845608028654
    c1 = c0 * 0.044715
    I("v_mov_b32 v114, %s" % f32hex(c0))
    I("v_mov_b32 v115, %s" % f32hex(c1))
    for ch in range(2):
        m = lambda k: 32 + 2 * k + ch
        q = lambda k: 64 + 2 * k + ch
        I("v_add_f32 v98, v%d, v%d" % (m(0), m(1)))
        for k in range(2, 15):
            I("v_add_f32 v98, v98, v%d" % m(k))
        I("v_mul_f32 v98, v98, v111")
        I("v_fmac_f32 v98, v%d, v112" % m(15))
        I("v_mul_f32 v98, v98, v110")
        I("v_add_f32 v99, v%d, v%d" % (q(0), q(1)))
        for k in range(2, 16):
            I("v_add_f32 v99, v99, v%d" % q(k))
        I("v_mov_b32 v100, 0")
        for k in range(15):
            I("v_sub_f32 v101, v%d, v98" % m(k))
            I("v_fmac_f32 v100, v101, v101")
        I("v_fmac_f32 v99, v100, v111")
        I("v_sub_f32 v101, v%d, v98" % m(15))
        I("v_mul_f32 v101, v101, v101")
        I("v_fmac_f32 v99, v101, v112")
        I("v_mul_f32 v99, v99, v110")
        I("v_add_f32 v99, v99, v113")
        I("v_rsq_f32 v99, v99")
        I("s_nop 0")
        if ch == 0:
            I("v_lshlrev_b32 v100, 16, v96")
            I("v_lshlrev_b32 v101, 16, v97")
        else:
            I("v_and_b32 v100, 0xffff0000, v96")
            I("v_and_b32 v101, 0xffff0000, v97")
        I("v_mul_f32 v%d, v99, v100" % (104 + ch))
        I("v_fma_f32 v%d, -v98, v%d, v101" % (106 + ch, 104 + ch))
    I("s_mul_i32 s37, s30, 1985")
    I("s_add_u32 s37, s37, s32")
    I("s_lshl_b32 s37, s37, 9")
    for k in range(8):
        I("s_add_u32 s38, s32, %d" % (2 * k))
        I("s_cmp_ge_u32 s38, 1985")
        I("s_cbranch_scc1 KB_END")
        for ch in range(2):
            y = 16 + 2 * k + ch
            if DEBUG_COPY_Y:
                I("v_mov_b32 v%d, v%d" % (116 + ch, y))
                continue
            I("v_fma_f32 v116, v%d, v%d, v%d" % (y, 104 + ch, 106 + ch))
            I("v_mul_f32 v117, v116, v116")
            I("v_fma_f32 v117, v117, v115, v114")
            I("v_mul_f32 v117, v117, v116")
            I("v_exp_f32 v117, v117")
            I("s_nop 0")
            I("v_add_f32 v117, 1.0, v117")
            I("v_rcp_f32 v117, v117")
            I("s_nop 0")
            I("v_mul_f32 v%d, v116, v117" % (118 + ch))
        if DEBUG_COPY_Y:
            I("v_cvt_pk_bf16_f32 v120, v116, v117")
        else:
            I("v_cvt_pk_bf16_f32 v120, v118, v119")
        I("s_add_u32 s39, s37, %d" % (1024 * k))
        I("buffer_store_dword v120, v4, s[20:23], s39 offen")
    emit("KB_END:")
    I("s_endpgm")

def header():
    emit("; Kernarg layout for this problem (64 bytes, ptrs only, base s[0:1]):")
    emit("; @launch kernel=%s grid=(256,1,1) block=(256,1,1) lds=%d" % (KA, LDS_BYTES))
    emit("; @launch kernel=%s grid=(250,1,1) block=(256,1,1) lds=0" % KB)
    emit('.amdgcn_target "amdgcn-amd-amdhsa--gfx950"')
    emit(".text")

def descriptors():
    emit('.section .rodata,"a"')
    for name, nv, acc in ((KA, ACC_OFF + 64, ACC_OFF), (KB, 128, 128)):
        emit(".p2align 6")
        emit(".amdhsa_kernel %s" % name)
        emit("  .amdhsa_next_free_vgpr %d" % nv)
        emit("  .amdhsa_next_free_sgpr 64")
        emit("  .amdhsa_accum_offset %d" % acc)
        emit("  .amdhsa_group_segment_fixed_size 0")
        emit("  .amdhsa_kernarg_size 64")
        emit("  .amdhsa_user_sgpr_count 2")
        emit("  .amdhsa_user_sgpr_kernarg_segment_ptr 1")
        emit("  .amdhsa_system_sgpr_workgroup_id_x 1")
        emit(".end_amdhsa_kernel")

if __name__ == "__main__":
    header()
    gen_kernel_a()
    gen_kernel_b()
    descriptors()
    open(sys.argv[1] if len(sys.argv) > 1 else "standalone__self_sup_conv_stem_hubert__speech.s", "w").write("\n".join(out) + "\n")
```

```python
import sys

STAMP = bool(int(__import__("os").environ.get("STAMP", "0")))
STAMP_OFF = 8 << 20
TL = bool(int(__import__("os").environ.get("TL", "0")))
TL_OFF = 9 << 20
DEBUG_COPY_Y = bool(int(__import__("os").environ.get("DEBUG_COPY_Y", "0")))

KA = "standalone__self_sup_conv_stem_hubert__speech_kernel"
KB = "hubert_norm_kernel"

R = int(__import__("os").environ.get("RING", "4"))
MAP = __import__("os").environ.get("MAP", "B")
XP = int(__import__("os").environ.get("XP", "8"))
XL = bool(int(__import__("os").environ.get("XL", "0")))
PF = bool(int(__import__("os").environ.get("PF", "0")))
XST = R * 4096
WSH = 12 + (R.bit_length() - 1)
if XL:
    assert R == 4
    WSH = 15
LDS_STATS = 4 << WSH
LDS_BYTES = LDS_STATS + 2048

X_BYTES = 2 * 4000 * 256 * 2
W_BYTES = 31 * 256 * 256 * 2
Y_ROWS_PAD = 2048
Y_BYTES = 2 * Y_ROWS_PAD * 256 * 4
STATS_OFF = Y_BYTES
WS_USED = (10 << 20) if (STAMP or TL) else (Y_BYTES + 65536)
OUT_BYTES = 2 * 1985 * 256 * 2

out = []
def emit(s=""):
    out.append(s)
def I(s):
    out.append("    " + s)

V_XOFF = 1
V_WOFF = [2, 3, 4, 5]
V_TR = [6, 7]
A_BASE = 16
B_BASE = 144
NUM_VGPR = 176
ACC_OFF = 176
def A(set_, slot, s):
    b = A_BASE + set_ * 64 + slot * 8 + 4 * s
    return b
def B(buf, s, nt):
    return B_BASE + buf * 16 + (s * 2 + nt) * 4
def ACC(j, nt):
    return (j * 2 + nt) * 4
def vr(b, n=4):
    return "v[%d:%d]" % (b, b + n - 1)
def ar(b, n=4):
    return "a[%d:%d]" % (b, b + n - 1)

S_WV = 3
S_X = 4
S_BIAS = 8
S_WS = 10
SRD_X = 12
SRD_W = 16
SRD_WS = 20
SRD_B = 24
S_LDS = 28
S_NT = 29
S_XB = 30
S_W0 = 36
S_WT = 37
S_B = 38
S_L0 = 39
S_MT = 40
S_TMP = 41
S_TMP2 = 42
S_NVALID = 43
S_EXEC_SAVE = 44
S_MASK = 46
S_YB = 48
S_HI = 56

class VmQ:
    def __init__(self):
        self.q = []
    def issue(self, tag):
        self.q.append(tag)
    def wait_for(self, tag):
        idx = None
        for i, t in enumerate(self.q):
            if t == tag:
                idx = i
        if idx is None:
            return
        n = len(self.q) - 1 - idx
        assert n <= 63
        I("s_waitcnt vmcnt(%d)" % n)
        self.q = self.q[idx + 1:]
    def wait_all(self):
        I("s_waitcnt vmcnt(0)")
        self.q = []

_stamp_idx = [0]
def stamp():
    if not STAMP:
        return
    I("s_memtime s[60:61]")
    I("s_waitcnt lgkmcnt(0)")
    I("v_writelane_b32 v15, s60, %d" % _stamp_idx[0])
    _stamp_idx[0] += 1

def xoff(g, p, s):
    tot = (2 * g + p) * 512 + 64 * s
    return S_XB + tot // 4096, tot % 4096

def tap_of(sig):
    return 2 * sig if sig < 16 else 2 * (sig - 16) + 1

def gen_kernel_a():
    vm = VmQ()
    emit(".globl %s" % KA)
    emit(".p2align 8")
    emit(".type %s,@function" % KA)
    emit("%s:" % KA)
    I("s_cmp_ge_u32 s2, 256")
    I("s_cbranch_scc1 KA_EXIT")
    if TL:
        I("s_memrealtime s[62:63]")
    I("s_load_dwordx4 s[4:7], s[0:1], 0")
    I("s_load_dwordx2 s[8:9], s[0:1], 16")
    I("s_load_dwordx2 s[10:11], s[0:1], 56")
    I("v_and_b32 v8, 63, v0")
    I("v_lshrrev_b32 v9, 6, v0")
    I("v_and_b32 v10, 15, v8")
    I("v_lshrrev_b32 v11, 4, v8")
    I("v_readfirstlane_b32 s%d, v9" % S_WV)
    I("v_lshlrev_b32 v%d, 13, v10" % V_XOFF)
    I("v_lshl_add_u32 v%d, v11, 4, v%d" % (V_XOFF, V_XOFF))
    I("v_lshrrev_b32 v12, 2, v8")
    I("v_and_b32 v13, 3, v8")
    I("v_lshrrev_b32 v14, 5, v8")
    I("v_lshlrev_b32 v14, 1, v14")
    I("v_xor_b32 v13, v13, v14")
    I("v_lshlrev_b32 v%d, 9, v12" % V_WOFF[0])
    I("v_lshl_add_u32 v%d, v13, 4, v%d" % (V_WOFF[0], V_WOFF[0]))
    for c in range(1, 4):
        I("v_add_u32 v%d, %d, v%d" % (V_WOFF[c], 7168 * c, V_WOFF[0]))
    I("v_lshrrev_b32 v12, 2, v10")
    I("v_lshl_add_u32 v12, v11, 3, v12")
    I("v_lshlrev_b32 v12, 6, v12")
    I("v_and_b32 v13, 3, v10")
    I("v_lshl_add_u32 v12, v13, 3, v12")
    I("v_and_b32 v13, 1, v11")
    I("v_lshlrev_b32 v13, 5, v13")
    I("s_lshl_b32 s%d, s%d, %d" % (S_LDS, S_WV, WSH))
    I("v_add_u32 v%d, v12, v13" % V_TR[0])
    I("v_add_u32 v%d, s%d, v%d" % (V_TR[0], S_LDS, V_TR[0]))
    I("v_xor_b32 v%d, 32, v%d" % (V_TR[1], V_TR[0]))
    if XL:
        I("v_lshrrev_b32 v13, 3, v8")
        I("v_and_b32 v14, 7, v8")
        I("v_xor_b32 v14, v14, v13")
        I("v_lshlrev_b32 v13, 13, v13")
        I("v_lshl_add_u32 v13, v14, 4, v13")
        I("v_and_b32 v12, 7, v10")
        I("v_xor_b32 v14, v11, v12")
        I("v_lshlrev_b32 v14, 4, v14")
        I("v_lshl_add_u32 v14, v10, 7, v14")
        I("s_add_u32 s%d, s%d, %d" % (S_TMP, S_LDS, XST))
        I("v_add_u32 v14, s%d, v14" % S_TMP)
        I("v_mov_b32 v8, v13")
        I("v_add_u32 v9, 0x10000, v13")
        I("v_mov_b32 v10, v14")
        I("v_xor_b32 v11, 64, v14")
    if MAP == "B":
        I("s_lshr_b32 s%d, s2, 5" % S_NT)
        I("s_and_b32 s%d, s2, 31" % S_TMP)
    elif MAP == "A":
        I("s_and_b32 s%d, s2, 7" % S_NT)
        I("s_lshr_b32 s%d, s2, 3" % S_TMP)
    else:
        I("s_and_b32 s%d, s2, 3" % S_NT)
        I("s_lshl_b32 s%d, s%d, 1" % (S_NT, S_NT))
        I("s_bfe_u32 s%d, s2, 0x10003" % S_TMP2)
        I("s_or_b32 s%d, s%d, s%d" % (S_NT, S_NT, S_TMP2))
        I("s_lshr_b32 s%d, s2, 4" % S_TMP)
        I("s_bfe_u32 s%d, s2, 0x10002" % S_TMP2)
        I("s_lshl_b32 s%d, s%d, 4" % (S_TMP2, S_TMP2))
        I("s_or_b32 s%d, s%d, s%d" % (S_TMP, S_TMP, S_TMP2))
    I("s_lshr_b32 s%d, s%d, 4" % (S_B, S_TMP))
    I("s_and_b32 s%d, s%d, 15" % (S_MT, S_TMP))
    I("s_lshl_b32 s%d, s%d, 7" % (S_L0, S_MT))
    I("s_waitcnt lgkmcnt(0)")
    for srd, ptr, nb in ((SRD_X, 4, X_BYTES), (SRD_W, 6, W_BYTES), (SRD_WS, 10, WS_USED), (SRD_B, 8, 512)):
        I("s_mov_b32 s%d, s%d" % (srd, ptr))
        I("s_and_b32 s%d, s%d, 0xffff" % (srd + 1, ptr + 1))
        I("s_mov_b32 s%d, %d" % (srd + 2, nb))
        I("s_mov_b32 s%d, 0x00020000" % (srd + 3))
    I("s_mul_i32 s%d, s%d, 2048000" % (S_TMP, S_B))
    I("s_lshl_b32 s%d, s%d, 10" % (S_TMP2, S_L0))
    I("s_add_u32 s%d, s%d, s%d" % (S_TMP, S_TMP, S_TMP2))
    I("s_lshl_b32 s%d, s%d, 7" % (S_TMP2, S_WV))
    I("s_add_u32 s%d, s%d, s%d" % (S_XB, S_TMP, S_TMP2))
    for i in range(1, 6):
        I("s_add_u32 s%d, s%d, %d" % (S_XB + i, S_XB, 4096 * i))
    I("s_lshl_b32 s%d, s%d, 15" % (S_TMP, S_WV))
    I("s_lshl_b32 s%d, s%d, 6" % (S_TMP2, S_NT))
    I("s_add_u32 s%d, s%d, s%d" % (S_W0, S_TMP, S_TMP2))
    I("s_mov_b32 s%d, 0x80008000" % S_MASK)
    I("s_mov_b32 s%d, 0x80008000" % (S_MASK + 1))
    I("s_sub_u32 s%d, 1985, s%d" % (S_NVALID, S_L0))
    I("s_min_u32 s%d, s%d, 128" % (S_NVALID, S_NVALID))
    stamp()

    def dma(sig):
        st = sig % R
        L = []
        L.append(("s", "s_add_u32 s%d, s%d, %d" % (S_WT, S_W0, tap_of(sig) * 131072)))
        L.append(("s", "s_add_u32 m0, s%d, %d" % (S_LDS, st * 4096)))
        L.append(("s", "s_nop 0"))
        for c in range(4):
            L.append(("vm:dma%d" % sig,
                      "buffer_load_dwordx4 v%d, s[%d:%d], s%d offen offset:%d lds" % (V_WOFF[c], SRD_W, SRD_W + 3, S_WT, 1024 * c)))
        return L

    def xload(set_, slot, g, p, tag):
        L = []
        for s in range(2):
            sg, imm = xoff(g, p, s)
            L.append(("vm:" + tag, "buffer_load_dwordx4 %s, v%d, s[%d:%d], s%d offen offset:%d" %
                      (vr(A(set_, slot, s)), V_XOFF, SRD_X, SRD_X + 3, sg, imm)))
        return L

    def xdma(g, p, tag):
        L = []
        tot = (2 * g + p) * 512
        sg, imm = S_XB + tot // 4096, tot % 4096
        for h in range(2):
            L.append(("s", "s_add_u32 m0, s%d, %d" % (S_LDS, XST + g * 2048 + h * 1024 - imm)))
            L.append(("s", "s_nop 0"))
            L.append(("vm:" + tag, "buffer_load_dwordx4 v%d, s[%d:%d], s%d offen offset:%d lds" % (8 + h, SRD_X, SRD_X + 3, sg, imm)))
        return L

    def xrd(set_, g):
        return [("ds", "ds_read_b128 %s, v%d offset:%d" % (vr(A(set_, g, s)), 10 + s, g * 2048)) for s in range(2)]

    def trreads(sig):
        buf = sig % 2
        st = sig % R
        L = []
        for s in range(2):
            for nt in range(2):
                for jh in range(2):
                    b = B(buf, s, nt) + 2 * jh
                    L.append(("ds", "ds_read_b64_tr_b16 %s, v%d offset:%d" % (vr(b, 2), V_TR[nt], st * 4096 + (32 * s + 4 * jh) * 64)))
        return L

    def put(items):
        for kind, txt in items:
            if kind.startswith("vm:"):
                vm.issue(kind[3:])
            elif kind.startswith("wait:"):
                vm.wait_for(kind[5:])
                continue
            I(txt)

    put(dma(0))
    for f in range(8):
        put(xdma(f, 0, "xa0_%d" % f) if XL else xload(0, f, f, 0, "xa0_%d" % f))
    for sig in range(1, R):
        put(dma(sig))
    if PF:
        I("s_lshr_b32 s%d, s2, 3" % S_TMP)
        I("s_lshl_b32 s%d, s%d, 2" % (S_TMP, S_TMP))
        I("s_add_u32 s%d, s%d, s%d" % (S_TMP, S_TMP, S_WV))
        I("s_lshl_b32 s%d, s%d, 15" % (S_TMP, S_TMP))
        I("s_and_b32 s%d, s2, 3" % S_TMP2)
        I("s_lshl_b32 s%d, s%d, 7" % (S_TMP2, S_TMP2))
        I("s_add_u32 s%d, s%d, s%d" % (S_TMP, S_TMP, S_TMP2))
        I("v_and_b32 v12, 63, v0")
        I("v_lshlrev_b32 v12, 9, v12")
        I("v_add_u32 v12, s%d, v12" % S_TMP)
        I("buffer_load_dword v13, v12, s[%d:%d], 0 offen" % (SRD_W, SRD_W + 3))
        vm.issue("pf")
    stamp()
    for i in range(64):
        I("v_accvgpr_write_b32 a%d, 0" % i)
    stamp()
    vm.wait_for("dma0")
    stamp()
    put(trreads(0))
    if XL:
        for f in range(8):
            vm.wait_for("xa0_%d" % f)
            put(xrd(0, f))
    if STAMP:
        stamp()
    NSTEP = 31
    for sig in range(NSTEP):
        p = 0 if sig < 16 else 1
        u = sig if sig < 16 else sig - 16
        umax = 15 if p == 0 else 14
        buf = sig % 2
        emit("; ---- step %d (p=%d u=%d tap=%d)" % (sig, p, u, tap_of(sig)))
        side = {}
        def at(k, items):
            side.setdefault(k, []).extend(items)
        if sig == 0 and XL:
            pre = []
        elif sig == 0:
            pre = []
            for f in range(8):
                at(4 * f - 1, [("wait:xa0_%d" % f, "")]) if f > 0 else pre.append(("wait:xa0_0", ""))
        elif sig == 16 and not XL:
            pre = [("wait:xa1", "")]
        else:
            pre = []
        g_new = u + 8
        if g_new <= umax + 7:
            slot = u % 8
            for k in range(8):
                reg = A(p, slot, 0) + k
                at(3 + k // 2, [("v", "v_mov_b32_dpp v%d, v%d row_shl:1 row_mask:0xf bank_mask:0xf" % (reg, reg))])
            L = [("s", "s_mov_b64 exec, s[%d:%d]" % (S_MASK, S_MASK + 1))]
            L += xload(p, slot, g_new, p, "bnd%d" % sig)
            L += [("s", "s_mov_b64 exec, -1")]
            at(7, L)
        if u >= 1:
            at(27, [("wait:bnd%d" % (sig - 1), "")])
        if sig + R < NSTEP:
            at(9, dma(sig + R))
        if sig + 1 < NSTEP:
            L = [("wait:dma%d" % (sig + 1), "")] + trreads(sig + 1)
            for k, it in enumerate(L):
                at(14 + k // 2, [it])
        if XL:
            if sig < 8:
                at(22, xdma(sig, 1, "xa1_%d" % sig))
            elif sig < 16:
                at(24, [("wait:xa1_%d" % (sig - 8), "")] + xrd(1, sig - 8))
        elif XP == 8:
            if sig < 8:
                at(22, xload(1, sig, sig, 1, "xa1"))
        else:
            if sig < 16:
                at(22, [xload(1, sig // 2, sig // 2, 1, "xa1")[sig % 2]])
        I("s_waitcnt lgkmcnt(0)")
        put(pre)
        stamp()
        idx = 0
        for j in range(8):
            slot = (u + j) % 8
            for s in range(2):
                for nt in range(2):
                    I("v_mfma_f32_16x16x32_bf16 %s, %s, %s, %s" %
                      (ar(ACC(j, nt)), vr(A(p, slot, s)), vr(B(buf, s, nt)), ar(ACC(j, nt))))
                    if idx in side:
                        put(side[idx])
                    idx += 1
    emit("; ---- epilogue")
    stamp()
    vm.wait_all()
    stamp()
    I("s_nop 7")
    I("s_nop 7")
    I("v_and_b32 v8, 63, v0")
    I("v_lshlrev_b32 v9, 4, v8")
    I("v_add_u32 v12, s%d, v9" % S_LDS)
    for j in range(8):
        for nt in range(2):
            I("ds_write_b128 v12, %s offset:%d" % (ar(ACC(j, nt)), (j * 2 + nt) * 1024))
    I("s_waitcnt lgkmcnt(0)")
    I("s_barrier")
    I("s_lshl_b32 s%d, s%d, 12" % (S_TMP, S_WV))
    I("v_add_u32 v13, s%d, v9" % S_TMP)
    def P(w, blk):
        return 16 + (w * 4 + blk) * 4
    for w in range(4):
        if w > 0:
            I("v_add_u32 v13, %d, v13" % (1 << WSH))
        for blk in range(4):
            I("ds_read_b128 %s, v13 offset:%d" % (vr(P(w, blk)), blk * 1024))
    I("v_and_b32 v10, 15, v8")
    I("v_lshrrev_b32 v11, 4, v8")
    I("s_lshl_b32 s%d, s%d, 6" % (S_TMP, S_NT))
    I("v_lshlrev_b32 v14, 1, v10")
    I("buffer_load_ushort v80, v14, s[%d:%d], s%d offen" % (SRD_B, SRD_B + 3, S_TMP))
    I("buffer_load_ushort v81, v14, s[%d:%d], s%d offen offset:32" % (SRD_B, SRD_B + 3, S_TMP))
    I("s_waitcnt vmcnt(0) lgkmcnt(0)")
    I("v_lshlrev_b32 v80, 16, v80")
    I("v_lshlrev_b32 v81, 16, v81")
    for blk in range(4):
        nt = blk % 2
        for i in range(4):
            r = P(0, blk) + i
            I("v_add_f32 v%d, v%d, v%d" % (r, r, P(1, blk) + i))
            I("v_add_f32 v%d, v%d, v%d" % (P(2, blk) + i, P(2, blk) + i, P(3, blk) + i))
            I("v_add_f32 v%d, v%d, v%d" % (r, r, P(2, blk) + i))
            I("v_add_f32 v%d, v%d, v%d" % (r, r, 80 + nt))
    I("v_lshlrev_b32 v14, 15, v11")
    I("v_lshl_add_u32 v14, v10, 2, v14")
    I("s_lshl_b32 s%d, s%d, 11" % (S_TMP, S_B))
    I("s_add_u32 s%d, s%d, s%d" % (S_TMP, S_TMP, S_L0))
    I("s_lshl_b32 s%d, s%d, 1" % (S_TMP2, S_WV))
    I("s_add_u32 s%d, s%d, s%d" % (S_TMP, S_TMP, S_TMP2))
    I("s_lshl_b32 s%d, s%d, 10" % (S_TMP, S_TMP))
    I("s_lshl_b32 s%d, s%d, 7" % (S_TMP2, S_NT))
    I("s_add_u32 s%d, s%d, s%d" % (S_YB, S_TMP, S_TMP2))
    for blk in range(4):
        jp, nt = blk // 2, blk % 2
        for i in range(4):
            I("s_add_u32 s%d, s%d, %d" % (S_TMP, S_YB, (8 * i + jp) * 1024))
            I("buffer_store_dword v%d, v14, s[%d:%d], s%d offen offset:%d" % (P(0, blk) + i, SRD_WS, SRD_WS + 3, S_TMP, 64 * nt))
    if STAMP:
        stamp()
        I("s_lshl_b32 s%d, s2, 10" % S_TMP)
        I("s_lshl_b32 s%d, s%d, 8" % (S_TMP2, S_WV))
        I("s_add_u32 s%d, s%d, s%d" % (S_TMP, S_TMP, S_TMP2))
        I("s_add_u32 s%d, s%d, %d" % (S_TMP, S_TMP, STAMP_OFF))
        I("v_lshlrev_b32 v90, 2, v8")
        I("buffer_store_dword v15, v90, s[%d:%d], s%d offen" % (SRD_WS, SRD_WS + 3, S_TMP))
    I("s_lshl_b32 s%d, s%d, 1" % (S_TMP2, S_WV))
    I("v_lshlrev_b32 v15, 5, v11")
    I("v_add_u32 v15, s%d, v15" % S_TMP2)
    def M(jp, i):
        return 82 + jp * 4 + i
    for jp in range(2):
        for i in range(4):
            I("v_add_u32 v90, %d, v15" % (8 * i + jp))
            I("v_cmp_gt_u32 vcc, s%d, v90" % S_NVALID)
            I("s_nop 1")
            I("v_cndmask_b32 v%d, 0, 1.0, vcc" % M(jp, i))
    I("v_mov_b32 v91, 0")
    I("v_mov_b32 v92, 0")
    I("v_mov_b32 v93, 0")
    for jp in range(2):
        for i in range(4):
            I("v_add_f32 v91, v91, v%d" % M(jp, i))
            for nt in range(2):
                I("v_fmac_f32 v%d, v%d, v%d" % (92 + nt, P(0, jp * 2 + nt) + i, M(jp, i)))
    def allreduce_q(regs):
        for swap in ("v_permlane32_swap_b32", "v_permlane16_swap_b32"):
            for k, r in enumerate(regs):
                I("v_mov_b32 v%d, v%d" % (120 + k, r))
            I("s_nop 1")
            for k, r in enumerate(regs):
                I("%s v%d, v%d" % (swap, r, 120 + k))
            I("s_nop 1")
            for k, r in enumerate(regs):
                I("v_add_f32 v%d, v%d, v%d" % (r, r, 120 + k))
    allreduce_q([91, 92, 93])
    I("v_rcp_f32 v94, v91")
    I("s_nop 0")
    I("v_mul_f32 v92, v92, v94")
    I("v_mul_f32 v93, v93, v94")
    I("v_mov_b32 v95, 0")
    I("v_mov_b32 v96, 0")
    for jp in range(2):
        for i in range(4):
            for nt in range(2):
                I("v_sub_f32 v97, v%d, v%d" % (P(0, jp * 2 + nt) + i, 92 + nt))
                I("v_mul_f32 v97, v97, v%d" % M(jp, i))
                I("v_fmac_f32 v%d, v97, v97" % (95 + nt))
    allreduce_q([95, 96])
    I("s_lshl_b32 s%d, s%d, 9" % (S_TMP, S_WV))
    I("v_lshlrev_b32 v14, 4, v10")
    I("v_add_u32 v14, s%d, v14" % S_TMP)
    I("v_add_u32 v14, %d, v14" % LDS_STATS)
    I("s_mov_b64 exec, 0xffff")
    for nt in range(2):
        I("v_mov_b32 v100, v%d" % (92 + nt))
        I("v_mov_b32 v101, v%d" % (95 + nt))
        I("v_mov_b32 v102, v91")
        I("v_mov_b32 v103, 0")
        I("ds_write_b128 v14, v[100:103] offset:%d" % (nt * 256))
    I("s_mov_b64 exec, -1")
    I("s_waitcnt lgkmcnt(0)")
    I("s_barrier")
    I("s_cmp_lg_u32 s%d, 0" % S_WV)
    I("s_cbranch_scc1 KA_END")
    I("s_mov_b32 exec_lo, -1")
    I("s_mov_b32 exec_hi, 0")
    I("v_lshlrev_b32 v14, 4, v8")
    I("v_add_u32 v14, %d, v14" % LDS_STATS)
    for w in range(4):
        I("ds_read_b128 v[%d:%d], v14 offset:%d" % (100 + 4 * w, 103 + 4 * w, w * 512))
    I("s_waitcnt lgkmcnt(0)")
    I("v_add_f32 v90, v102, v106")
    I("v_add_f32 v91, v110, v114")
    I("v_add_f32 v90, v90, v91")
    I("v_mul_f32 v91, v100, v102")
    for w in range(1, 4):
        I("v_fmac_f32 v91, v%d, v%d" % (100 + 4 * w, 102 + 4 * w))
    I("v_rcp_f32 v92, v90")
    I("s_nop 0")
    I("v_mul_f32 v91, v91, v92")
    I("v_add_f32 v93, v101, v105")
    I("v_add_f32 v94, v109, v113")
    I("v_add_f32 v93, v93, v94")
    for w in range(4):
        I("v_sub_f32 v94, v%d, v91" % (100 + 4 * w))
        I("v_mul_f32 v95, v94, v%d" % (102 + 4 * w))
        I("v_fmac_f32 v93, v94, v95")
    I("s_lshl_b32 s%d, s%d, 4" % (S_TMP, S_B))
    I("s_add_u32 s%d, s%d, s%d" % (S_TMP, S_TMP, S_MT))
    I("s_lshl_b32 s%d, s%d, 10" % (S_TMP, S_TMP))
    I("s_lshl_b32 s%d, s%d, 7" % (S_TMP2, S_NT))
    I("s_add_u32 s%d, s%d, s%d" % (S_TMP, S_TMP, S_TMP2))
    I("s_add_u32 s%d, s%d, %d" % (S_TMP, S_TMP, STATS_OFF))
    I("v_lshlrev_b32 v14, 2, v8")
    I("buffer_store_dword v91, v14, s[%d:%d], s%d offen" % (SRD_WS, SRD_WS + 3, S_TMP))
    I("s_add_u32 s%d, s%d, 32768" % (S_TMP, S_TMP))
    I("buffer_store_dword v93, v14, s[%d:%d], s%d offen" % (SRD_WS, SRD_WS + 3, S_TMP))
    emit("KA_END:")
    if TL:
        I("s_waitcnt vmcnt(0) lgkmcnt(0)")
        I("s_memrealtime s[58:59]")
        I("s_lshl_b32 s%d, s2, 5" % S_TMP)
        I("s_lshl_b32 s%d, s%d, 3" % (S_TMP2, S_WV))
        I("s_add_u32 s%d, s%d, s%d" % (S_TMP, S_TMP, S_TMP2))
        I("s_add_u32 s%d, s%d, %d" % (S_TMP, S_TMP, TL_OFF))
        I("s_waitcnt lgkmcnt(0)")
        I("s_mov_b64 exec, 1")
        I("v_mov_b32 v100, s62")
        I("v_mov_b32 v101, s58")
        I("v_mov_b32 v102, 0")
        I("buffer_store_dwordx2 v[100:101], v102, s[%d:%d], s%d offen" % (SRD_WS, SRD_WS + 3, S_TMP))
    emit("KA_EXIT:")
    I("s_endpgm")

def f32hex(x):
    import struct
    return "0x%08x" % struct.unpack("<I", struct.pack("<f", x))[0]

def gen_kernel_b():
    emit(".globl %s" % KB)
    emit(".p2align 8")
    emit(".type %s,@function" % KB)
    emit("%s:" % KB)
    I("s_cmp_ge_u32 s2, 250")
    I("s_cbranch_scc1 KB_EXIT")
    if TL:
        I("s_memrealtime s[62:63]")
    I("s_load_dwordx4 s[4:7], s[0:1], 24")
    I("s_load_dwordx2 s[8:9], s[0:1], 40")
    I("s_load_dwordx2 s[10:11], s[0:1], 56")
    I("v_and_b32 v1, 127, v0")
    I("v_lshrrev_b32 v2, 7, v0")
    I("s_nop 0")
    I("v_readfirstlane_b32 s3, v2")
    I("s_cmp_ge_u32 s2, 125")
    I("s_cselect_b32 s30, 1, 0")
    I("s_mul_i32 s31, s30, 125")
    I("s_sub_u32 s31, s2, s31")
    I("s_lshl_b32 s31, s31, 4")
    I("s_add_u32 s32, s31, s3")
    I("s_waitcnt lgkmcnt(0)")
    for srd, ptr, nb in ((12, 4, 512), (16, 6, 512), (20, 8, OUT_BYTES), (24, 10, WS_USED)):
        I("s_mov_b32 s%d, s%d" % (srd, ptr))
        I("s_and_b32 s%d, s%d, 0xffff" % (srd + 1, ptr + 1))
        I("s_mov_b32 s%d, %d" % (srd + 2, nb))
        I("s_mov_b32 s%d, 0x00020000" % (srd + 3))
    I("v_lshlrev_b32 v3, 3, v1")
    I("v_lshlrev_b32 v4, 2, v1")
    I("s_lshl_b32 s33, s30, 11")
    I("s_add_u32 s33, s33, s32")
    I("s_lshl_b32 s33, s33, 10")
    for k in range(8):
        if k > 0:
            I("s_add_u32 s34, s33, %d" % (2048 * k))
        I("buffer_load_dwordx2 v[%d:%d], v3, s[24:27], s%d offen" % (16 + 2 * k, 17 + 2 * k, 33 if k == 0 else 34))
    I("s_lshl_b32 s35, s30, 14")
    I("s_add_u32 s35, s35, %d" % STATS_OFF)
    for arr in range(2):
        for k in range(16):
            if k % 4 == 0:
                I("s_add_u32 s36, s35, %d" % (arr * 32768 + (k // 4) * 4096))
            base = 32 + arr * 32 + 2 * k
            I("buffer_load_dwordx2 v[%d:%d], v3, s[24:27], s36 offen offset:%d" % (base, base + 1, 1024 * (k % 4)))
    I("buffer_load_dword v96, v4, s[12:15], 0 offen")
    I("buffer_load_dword v97, v4, s[16:19], 0 offen")
    I("s_waitcnt vmcnt(0)")
    inv_l = f32hex(1.0 / 1985.0)
    I("v_mov_b32 v110, %s" % inv_l)
    I("v_mov_b32 v111, 0x43000000")
    I("v_mov_b32 v112, 0x42820000")
    I("v_mov_b32 v113, %s" % f32hex(1e-5))
    c0 = -2.0 * 1.4426950408889634 * 0.7978845608028654
    c1 = c0 * 0.044715
    I("v_mov_b32 v114, %s" % f32hex(c0))
    I("v_mov_b32 v115, %s" % f32hex(c1))
    for ch in range(2):
        m = lambda k: 32 + 2 * k + ch
        q = lambda k: 64 + 2 * k + ch
        I("v_add_f32 v98, v%d, v%d" % (m(0), m(1)))
        for k in range(2, 15):
            I("v_add_f32 v98, v98, v%d" % m(k))
        I("v_mul_f32 v98, v98, v111")
        I("v_fmac_f32 v98, v%d, v112" % m(15))
        I("v_mul_f32 v98, v98, v110")
        I("v_add_f32 v99, v%d, v%d" % (q(0), q(1)))
        for k in range(2, 16):
            I("v_add_f32 v99, v99, v%d" % q(k))
        I("v_mov_b32 v100, 0")
        for k in range(15):
            I("v_sub_f32 v101, v%d, v98" % m(k))
            I("v_fmac_f32 v100, v101, v101")
        I("v_fmac_f32 v99, v100, v111")
        I("v_sub_f32 v101, v%d, v98" % m(15))
        I("v_mul_f32 v101, v101, v101")
        I("v_fmac_f32 v99, v101, v112")
        I("v_mul_f32 v99, v99, v110")
        I("v_add_f32 v99, v99, v113")
        I("v_rsq_f32 v99, v99")
        I("s_nop 0")
        if ch == 0:
            I("v_lshlrev_b32 v100, 16, v96")
            I("v_lshlrev_b32 v101, 16, v97")
        else:
            I("v_and_b32 v100, 0xffff0000, v96")
            I("v_and_b32 v101, 0xffff0000, v97")
        I("v_mul_f32 v%d, v99, v100" % (104 + ch))
        I("v_fma_f32 v%d, -v98, v%d, v101" % (106 + ch, 104 + ch))
    I("s_mul_i32 s37, s30, 1985")
    I("s_add_u32 s37, s37, s32")
    I("s_lshl_b32 s37, s37, 9")
    for k in range(8):
        I("s_add_u32 s38, s32, %d" % (2 * k))
        I("s_cmp_ge_u32 s38, 1985")
        I("s_cbranch_scc1 KB_END")
        for ch in range(2):
            y = 16 + 2 * k + ch
            if DEBUG_COPY_Y:
                I("v_mov_b32 v%d, v%d" % (116 + ch, y))
                continue
            I("v_fma_f32 v116, v%d, v%d, v%d" % (y, 104 + ch, 106 + ch))
            I("v_mul_f32 v117, v116, v116")
            I("v_fma_f32 v117, v117, v115, v114")
            I("v_mul_f32 v117, v117, v116")
            I("v_exp_f32 v117, v117")
            I("s_nop 0")
            I("v_add_f32 v117, 1.0, v117")
            I("v_rcp_f32 v117, v117")
            I("s_nop 0")
            I("v_mul_f32 v%d, v116, v117" % (118 + ch))
        if DEBUG_COPY_Y:
            I("v_cvt_pk_bf16_f32 v120, v116, v117")
        else:
            I("v_cvt_pk_bf16_f32 v120, v118, v119")
        I("s_add_u32 s39, s37, %d" % (1024 * k))
        I("buffer_store_dword v120, v4, s[20:23], s39 offen")
    emit("KB_END:")
    if TL:
        I("s_waitcnt vmcnt(0) lgkmcnt(0)")
        I("s_memrealtime s[58:59]")
        I("s_lshl_b32 s40, s2, 5")
        I("v_lshrrev_b32 v100, 6, v0")
        I("s_nop 0")
        I("v_readfirstlane_b32 s41, v100")
        I("s_lshl_b32 s41, s41, 3")
        I("s_add_u32 s40, s40, s41")
        I("s_add_u32 s40, s40, %d" % (TL_OFF + 65536))
        I("s_waitcnt lgkmcnt(0)")
        I("s_mov_b64 exec, 1")
        I("v_mov_b32 v100, s62")
        I("v_mov_b32 v101, s58")
        I("v_mov_b32 v102, 0")
        I("buffer_store_dwordx2 v[100:101], v102, s[24:27], s40 offen")
    emit("KB_EXIT:")
    I("s_endpgm")

def header():
    emit("; Kernarg layout for this problem (64 bytes, ptrs only, base s[0:1]):")
    emit("; @launch kernel=%s grid=(256,1,1) block=(256,1,1) lds=%d" % (KA, LDS_BYTES))
    emit("; @launch kernel=%s grid=(250,1,1) block=(256,1,1) lds=0" % KB)
    emit('.amdgcn_target "amdgcn-amd-amdhsa--gfx950"')
    emit(".text")

def descriptors():
    emit('.section .rodata,"a"')
    for name, nv, acc in ((KA, ACC_OFF + 64, ACC_OFF), (KB, 128, 128)):
        emit(".p2align 6")
        emit(".amdhsa_kernel %s" % name)
        emit("  .amdhsa_next_free_vgpr %d" % nv)
        emit("  .amdhsa_next_free_sgpr 64")
        emit("  .amdhsa_accum_offset %d" % acc)
        emit("  .amdhsa_group_segment_fixed_size 0")
        emit("  .amdhsa_kernarg_size 64")
        emit("  .amdhsa_user_sgpr_count 2")
        emit("  .amdhsa_user_sgpr_kernarg_segment_ptr 1")
        emit("  .amdhsa_system_sgpr_workgroup_id_x 1")
        emit(".end_amdhsa_kernel")

if __name__ == "__main__":
    header()
    gen_kernel_a()
    gen_kernel_b()
    descriptors()
    open(sys.argv[1] if len(sys.argv) > 1 else "standalone__self_sup_conv_stem_hubert__speech.s", "w").write("\n".join(out) + "\n")
```

```python
import sys

STAMP = bool(int(__import__("os").environ.get("STAMP", "0")))
STAMP_OFF = 8 << 20
TL = bool(int(__import__("os").environ.get("TL", "0")))
TL_OFF = 9 << 20
DEBUG_COPY_Y = bool(int(__import__("os").environ.get("DEBUG_COPY_Y", "0")))

KA = "standalone__self_sup_conv_stem_hubert__speech_kernel"
KB = "hubert_norm_kernel"

R = int(__import__("os").environ.get("RING", "4"))
MAP = __import__("os").environ.get("MAP", "B")
XP = int(__import__("os").environ.get("XP", "8"))
XL = bool(int(__import__("os").environ.get("XL", "0")))
PF = int(__import__("os").environ.get("PF", "0"))
SPR = bool(int(__import__("os").environ.get("SPR", "0")))
XST = R * 4096
WSH = 12 + (R.bit_length() - 1)
if XL:
    assert R == 4
    WSH = 15
LDS_STATS = 4 << WSH
LDS_BYTES = LDS_STATS + 2048

X_BYTES = 2 * 4000 * 256 * 2
W_BYTES = 31 * 256 * 256 * 2
Y_ROWS_PAD = 2048
Y_BYTES = 2 * Y_ROWS_PAD * 256 * 4
STATS_OFF = Y_BYTES
WS_USED = (10 << 20) if (STAMP or TL) else (Y_BYTES + 65536)
OUT_BYTES = 2 * 1985 * 256 * 2

out = []
def emit(s=""):
    out.append(s)
def I(s):
    out.append("    " + s)

V_XOFF = 1
V_WOFF = [2, 3, 4, 5]
V_TR = [6, 7]
A_BASE = 16
B_BASE = 144
NUM_VGPR = 176
ACC_OFF = 176
def A(set_, slot, s):
    b = A_BASE + set_ * 64 + slot * 8 + 4 * s
    return b
def B(buf, s, nt):
    return B_BASE + buf * 16 + (s * 2 + nt) * 4
def ACC(j, nt):
    return (j * 2 + nt) * 4
def vr(b, n=4):
    return "v[%d:%d]" % (b, b + n - 1)
def ar(b, n=4):
    return "a[%d:%d]" % (b, b + n - 1)

S_WV = 3
S_X = 4
S_BIAS = 8
S_WS = 10
SRD_X = 12
SRD_W = 16
SRD_WS = 20
SRD_B = 24
S_LDS = 28
S_NT = 29
S_XB = 30
S_W0 = 36
S_WT = 37
S_B = 38
S_L0 = 39
S_MT = 40
S_TMP = 41
S_TMP2 = 42
S_NVALID = 43
S_EXEC_SAVE = 44
S_MASK = 46
S_YB = 48
S_HI = 56

class VmQ:
    def __init__(self):
        self.q = []
    def issue(self, tag):
        self.q.append(tag)
    def wait_for(self, tag):
        idx = None
        for i, t in enumerate(self.q):
            if t == tag:
                idx = i
        if idx is None:
            return
        n = len(self.q) - 1 - idx
        assert n <= 63
        I("s_waitcnt vmcnt(%d)" % n)
        self.q = self.q[idx + 1:]
    def wait_all(self):
        I("s_waitcnt vmcnt(0)")
        self.q = []

_stamp_idx = [0]
def stamp():
    if not STAMP:
        return
    I("s_memtime s[60:61]")
    I("s_waitcnt lgkmcnt(0)")
    I("v_writelane_b32 v15, s60, %d" % _stamp_idx[0])
    _stamp_idx[0] += 1

def xoff(g, p, s):
    tot = (2 * g + p) * 512 + 64 * s
    return S_XB + tot // 4096, tot % 4096

def tap_of(sig):
    return 2 * sig if sig < 16 else 2 * (sig - 16) + 1

def gen_kernel_a():
    vm = VmQ()
    emit(".globl %s" % KA)
    emit(".p2align 8")
    emit(".type %s,@function" % KA)
    emit("%s:" % KA)
    I("s_cmp_ge_u32 s2, 256")
    I("s_cbranch_scc1 KA_EXIT")
    if TL:
        I("s_memrealtime s[62:63]")
    I("s_load_dwordx4 s[4:7], s[0:1], 0")
    I("s_load_dwordx2 s[8:9], s[0:1], 16")
    I("s_load_dwordx2 s[10:11], s[0:1], 56")
    I("v_and_b32 v8, 63, v0")
    I("v_lshrrev_b32 v9, 6, v0")
    I("v_and_b32 v10, 15, v8")
    I("v_lshrrev_b32 v11, 4, v8")
    I("v_readfirstlane_b32 s%d, v9" % S_WV)
    I("v_lshlrev_b32 v%d, 13, v10" % V_XOFF)
    I("v_lshl_add_u32 v%d, v11, 4, v%d" % (V_XOFF, V_XOFF))
    I("v_lshrrev_b32 v12, 2, v8")
    I("v_and_b32 v13, 3, v8")
    I("v_lshrrev_b32 v14, 5, v8")
    I("v_lshlrev_b32 v14, 1, v14")
    I("v_xor_b32 v13, v13, v14")
    I("v_lshlrev_b32 v%d, 9, v12" % V_WOFF[0])
    I("v_lshl_add_u32 v%d, v13, 4, v%d" % (V_WOFF[0], V_WOFF[0]))
    for c in range(1, 4):
        I("v_add_u32 v%d, %d, v%d" % (V_WOFF[c], 7168 * c, V_WOFF[0]))
    I("v_lshrrev_b32 v12, 2, v10")
    I("v_lshl_add_u32 v12, v11, 3, v12")
    I("v_lshlrev_b32 v12, 6, v12")
    I("v_and_b32 v13, 3, v10")
    I("v_lshl_add_u32 v12, v13, 3, v12")
    I("v_and_b32 v13, 1, v11")
    I("v_lshlrev_b32 v13, 5, v13")
    I("s_lshl_b32 s%d, s%d, %d" % (S_LDS, S_WV, WSH))
    I("v_add_u32 v%d, v12, v13" % V_TR[0])
    I("v_add_u32 v%d, s%d, v%d" % (V_TR[0], S_LDS, V_TR[0]))
    I("v_xor_b32 v%d, 32, v%d" % (V_TR[1], V_TR[0]))
    if XL:
        I("v_lshrrev_b32 v13, 3, v8")
        I("v_and_b32 v14, 7, v8")
        I("v_xor_b32 v14, v14, v13")
        I("v_lshlrev_b32 v13, 13, v13")
        I("v_lshl_add_u32 v13, v14, 4, v13")
        I("v_and_b32 v12, 7, v10")
        I("v_xor_b32 v14, v11, v12")
        I("v_lshlrev_b32 v14, 4, v14")
        I("v_lshl_add_u32 v14, v10, 7, v14")
        I("s_add_u32 s%d, s%d, %d" % (S_TMP, S_LDS, XST))
        I("v_add_u32 v14, s%d, v14" % S_TMP)
        I("v_mov_b32 v8, v13")
        I("v_add_u32 v9, 0x10000, v13")
        I("v_mov_b32 v10, v14")
        I("v_xor_b32 v11, 64, v14")
    if MAP == "B":
        I("s_lshr_b32 s%d, s2, 5" % S_NT)
        I("s_and_b32 s%d, s2, 31" % S_TMP)
    elif MAP == "A":
        I("s_and_b32 s%d, s2, 7" % S_NT)
        I("s_lshr_b32 s%d, s2, 3" % S_TMP)
    else:
        I("s_and_b32 s%d, s2, 3" % S_NT)
        I("s_lshl_b32 s%d, s%d, 1" % (S_NT, S_NT))
        I("s_bfe_u32 s%d, s2, 0x10003" % S_TMP2)
        I("s_or_b32 s%d, s%d, s%d" % (S_NT, S_NT, S_TMP2))
        I("s_lshr_b32 s%d, s2, 4" % S_TMP)
        I("s_bfe_u32 s%d, s2, 0x10002" % S_TMP2)
        I("s_lshl_b32 s%d, s%d, 4" % (S_TMP2, S_TMP2))
        I("s_or_b32 s%d, s%d, s%d" % (S_TMP, S_TMP, S_TMP2))
    I("s_lshr_b32 s%d, s%d, 4" % (S_B, S_TMP))
    I("s_and_b32 s%d, s%d, 15" % (S_MT, S_TMP))
    I("s_lshl_b32 s%d, s%d, 7" % (S_L0, S_MT))
    I("s_waitcnt lgkmcnt(0)")
    for srd, ptr, nb in ((SRD_X, 4, X_BYTES), (SRD_W, 6, W_BYTES), (SRD_WS, 10, WS_USED), (SRD_B, 8, 512)):
        I("s_mov_b32 s%d, s%d" % (srd, ptr))
        I("s_and_b32 s%d, s%d, 0xffff" % (srd + 1, ptr + 1))
        I("s_mov_b32 s%d, %d" % (srd + 2, nb))
        I("s_mov_b32 s%d, 0x00020000" % (srd + 3))
    I("s_mul_i32 s%d, s%d, 2048000" % (S_TMP, S_B))
    I("s_lshl_b32 s%d, s%d, 10" % (S_TMP2, S_L0))
    I("s_add_u32 s%d, s%d, s%d" % (S_TMP, S_TMP, S_TMP2))
    I("s_lshl_b32 s%d, s%d, 7" % (S_TMP2, S_WV))
    I("s_add_u32 s%d, s%d, s%d" % (S_XB, S_TMP, S_TMP2))
    for i in range(1, 6):
        I("s_add_u32 s%d, s%d, %d" % (S_XB + i, S_XB, 4096 * i))
    I("s_lshl_b32 s%d, s%d, 15" % (S_TMP, S_WV))
    I("s_lshl_b32 s%d, s%d, 6" % (S_TMP2, S_NT))
    I("s_add_u32 s%d, s%d, s%d" % (S_W0, S_TMP, S_TMP2))
    I("s_mov_b32 s%d, 0x80008000" % S_MASK)
    I("s_mov_b32 s%d, 0x80008000" % (S_MASK + 1))
    I("s_sub_u32 s%d, 1985, s%d" % (S_NVALID, S_L0))
    I("s_min_u32 s%d, s%d, 128" % (S_NVALID, S_NVALID))
    stamp()

    def dma(sig):
        st = sig % R
        L = []
        L.append(("s", "s_add_u32 s%d, s%d, %d" % (S_WT, S_W0, tap_of(sig) * 131072)))
        L.append(("s", "s_add_u32 m0, s%d, %d" % (S_LDS, st * 4096)))
        L.append(("s", "s_nop 0"))
        for c in range(4):
            L.append(("vm:dma%d" % sig,
                      "buffer_load_dwordx4 v%d, s[%d:%d], s%d offen offset:%d lds" % (V_WOFF[c], SRD_W, SRD_W + 3, S_WT, 1024 * c)))
        return L

    def xload(set_, slot, g, p, tag):
        L = []
        for s in range(2):
            sg, imm = xoff(g, p, s)
            L.append(("vm:" + tag, "buffer_load_dwordx4 %s, v%d, s[%d:%d], s%d offen offset:%d" %
                      (vr(A(set_, slot, s)), V_XOFF, SRD_X, SRD_X + 3, sg, imm)))
        return L

    def xdma(g, p, tag):
        L = []
        tot = (2 * g + p) * 512
        sg, imm = S_XB + tot // 4096, tot % 4096
        for h in range(2):
            L.append(("s", "s_add_u32 m0, s%d, %d" % (S_LDS, XST + g * 2048 + h * 1024 - imm)))
            L.append(("s", "s_nop 0"))
            L.append(("vm:" + tag, "buffer_load_dwordx4 v%d, s[%d:%d], s%d offen offset:%d lds" % (8 + h, SRD_X, SRD_X + 3, sg, imm)))
        return L

    def xrd(set_, g):
        return [("ds", "ds_read_b128 %s, v%d offset:%d" % (vr(A(set_, g, s)), 10 + s, g * 2048)) for s in range(2)]

    def trreads(sig):
        buf = sig % 2
        st = sig % R
        L = []
        for s in range(2):
            for nt in range(2):
                for jh in range(2):
                    b = B(buf, s, nt) + 2 * jh
                    L.append(("ds", "ds_read_b64_tr_b16 %s, v%d offset:%d" % (vr(b, 2), V_TR[nt], st * 4096 + (32 * s + 4 * jh) * 64)))
        return L

    def put(items):
        for kind, txt in items:
            if kind.startswith("vm:"):
                vm.issue(kind[3:])
            elif kind.startswith("wait:"):
                vm.wait_for(kind[5:])
                continue
            I(txt)

    put(dma(0))
    for f in range(8):
        put(xdma(f, 0, "xa0_%d" % f) if XL else xload(0, f, f, 0, "xa0_%d" % f))
    for sig in range(1, R):
        put(dma(sig))
    if PF:
        I("s_lshr_b32 s%d, s2, 3" % S_TMP)
        I("s_lshl_b32 s%d, s%d, 2" % (S_TMP, S_TMP))
        I("s_add_u32 s%d, s%d, s%d" % (S_TMP, S_TMP, S_WV))
        I("s_lshl_b32 s%d, s%d, 15" % (S_TMP, S_TMP))
        I("s_and_b32 s%d, s2, 3" % S_TMP2)
        I("s_lshl_b32 s%d, s%d, 7" % (S_TMP2, S_TMP2))
        I("s_add_u32 s%d, s%d, s%d" % (S_TMP, S_TMP, S_TMP2))
        I("v_and_b32 v12, 63, v0")
        I("v_lshlrev_b32 v12, 9, v12")
        I("v_add_u32 v12, s%d, v12" % S_TMP)
        I("buffer_load_dword v13, v12, s[%d:%d], 0 offen" % (SRD_W, SRD_W + 3))
        vm.issue("pf")
        if PF >= 2:
            I("v_and_b32 v12, 63, v0")
            I("v_lshlrev_b32 v12, 10, v12")
            for i in range(3):
                I("buffer_load_dword v13, v12, s[%d:%d], s%d offen offset:512" % (SRD_X, SRD_X + 3, S_XB))
                vm.issue("pf")
                if i < 2:
                    I("v_add_u32 v12, 0x10000, v12")
    stamp()
    for i in range(64):
        I("v_accvgpr_write_b32 a%d, 0" % i)
    stamp()
    vm.wait_for("dma0")
    stamp()
    put(trreads(0))
    if XL:
        for f in range(8):
            vm.wait_for("xa0_%d" % f)
            put(xrd(0, f))
    if STAMP:
        stamp()
    NSTEP = 31
    for sig in range(NSTEP):
        p = 0 if sig < 16 else 1
        u = sig if sig < 16 else sig - 16
        umax = 15 if p == 0 else 14
        buf = sig % 2
        emit("; ---- step %d (p=%d u=%d tap=%d)" % (sig, p, u, tap_of(sig)))
        side = {}
        def at(k, items):
            side.setdefault(k, []).extend(items)
        if sig == 0 and XL:
            pre = []
        elif sig == 0:
            pre = []
            for f in range(8):
                at(4 * f - 1, [("wait:xa0_%d" % f, "")]) if f > 0 else pre.append(("wait:xa0_0", ""))
        elif sig == 16 and not XL:
            pre = [("wait:xa1", "")]
        else:
            pre = []
        g_new = u + 8
        if g_new <= umax + 7:
            slot = u % 8
            for k in range(8):
                reg = A(p, slot, 0) + k
                at((3 + k) if SPR else (3 + k // 2), [("v", "v_mov_b32_dpp v%d, v%d row_shl:1 row_mask:0xf bank_mask:0xf" % (reg, reg))])
            L = [("s", "s_mov_b64 exec, s[%d:%d]" % (S_MASK, S_MASK + 1))]
            L += xload(p, slot, g_new, p, "bnd%d" % sig)
            L += [("s", "s_mov_b64 exec, -1")]
            if SPR:
                at(11, L)
            else:
                at(7, L)
        if u >= 1:
            at(27, [("wait:bnd%d" % (sig - 1), "")])
        if sig + R < NSTEP:
            if SPR:
                dl = dma(sig + R)
                at(13, dl[0:2])
                for c in range(4):
                    at(14 + c, [dl[3 + c]])
            else:
                at(9, dma(sig + R))
        if sig + 1 < NSTEP:
            L = [("wait:dma%d" % (sig + 1), "")] + trreads(sig + 1)
            for k, it in enumerate(L):
                at((18 + max(k - 1, 0)) if SPR else (14 + k // 2), [it])
        if XL:
            if sig < 8:
                xl_ = xdma(sig, 1, "xa1_%d" % sig)
                if SPR:
                    at(26, [xl_[0]]); at(27, [xl_[2]]); at(28, [xl_[3]]); at(29, [xl_[5]])
                else:
                    at(22, xl_)
            elif sig < 16:
                at(28 if SPR else 24, [("wait:xa1_%d" % (sig - 8), "")] + xrd(1, sig - 8))
        elif XP == 8:
            if sig < 8:
                at(22, xload(1, sig, sig, 1, "xa1"))
        else:
            if sig < 16:
                at(22, [xload(1, sig // 2, sig // 2, 1, "xa1")[sig % 2]])
        I("s_waitcnt lgkmcnt(0)")
        put(pre)
        stamp()
        idx = 0
        for j in range(8):
            slot = (u + j) % 8
            for s in range(2):
                for nt in range(2):
                    I("v_mfma_f32_16x16x32_bf16 %s, %s, %s, %s" %
                      (ar(ACC(j, nt)), vr(A(p, slot, s)), vr(B(buf, s, nt)), ar(ACC(j, nt))))
                    if idx in side:
                        put(side[idx])
                    idx += 1
    emit("; ---- epilogue")
    stamp()
    vm.wait_all()
    stamp()
    I("s_nop 7")
    I("s_nop 7")
    I("v_and_b32 v8, 63, v0")
    I("v_lshlrev_b32 v9, 4, v8")
    I("v_add_u32 v12, s%d, v9" % S_LDS)
    for j in range(8):
        for nt in range(2):
            I("ds_write_b128 v12, %s offset:%d" % (ar(ACC(j, nt)), (j * 2 + nt) * 1024))
    I("s_waitcnt lgkmcnt(0)")
    I("s_barrier")
    I("s_lshl_b32 s%d, s%d, 12" % (S_TMP, S_WV))
    I("v_add_u32 v13, s%d, v9" % S_TMP)
    def P(w, blk):
        return 16 + (w * 4 + blk) * 4
    for w in range(4):
        if w > 0:
            I("v_add_u32 v13, %d, v13" % (1 << WSH))
        for blk in range(4):
            I("ds_read_b128 %s, v13 offset:%d" % (vr(P(w, blk)), blk * 1024))
    I("v_and_b32 v10, 15, v8")
    I("v_lshrrev_b32 v11, 4, v8")
    I("s_lshl_b32 s%d, s%d, 6" % (S_TMP, S_NT))
    I("v_lshlrev_b32 v14, 1, v10")
    I("buffer_load_ushort v80, v14, s[%d:%d], s%d offen" % (SRD_B, SRD_B + 3, S_TMP))
    I("buffer_load_ushort v81, v14, s[%d:%d], s%d offen offset:32" % (SRD_B, SRD_B + 3, S_TMP))
    I("s_waitcnt vmcnt(0) lgkmcnt(0)")
    I("v_lshlrev_b32 v80, 16, v80")
    I("v_lshlrev_b32 v81, 16, v81")
    for blk in range(4):
        nt = blk % 2
        for i in range(4):
            r = P(0, blk) + i
            I("v_add_f32 v%d, v%d, v%d" % (r, r, P(1, blk) + i))
            I("v_add_f32 v%d, v%d, v%d" % (P(2, blk) + i, P(2, blk) + i, P(3, blk) + i))
            I("v_add_f32 v%d, v%d, v%d" % (r, r, P(2, blk) + i))
            I("v_add_f32 v%d, v%d, v%d" % (r, r, 80 + nt))
    I("v_lshlrev_b32 v14, 15, v11")
    I("v_lshl_add_u32 v14, v10, 2, v14")
    I("s_lshl_b32 s%d, s%d, 11" % (S_TMP, S_B))
    I("s_add_u32 s%d, s%d, s%d" % (S_TMP, S_TMP, S_L0))
    I("s_lshl_b32 s%d, s%d, 1" % (S_TMP2, S_WV))
    I("s_add_u32 s%d, s%d, s%d" % (S_TMP, S_TMP, S_TMP2))
    I("s_lshl_b32 s%d, s%d, 10" % (S_TMP, S_TMP))
    I("s_lshl_b32 s%d, s%d, 7" % (S_TMP2, S_NT))
    I("s_add_u32 s%d, s%d, s%d" % (S_YB, S_TMP, S_TMP2))
    for blk in range(4):
        jp, nt = blk // 2, blk % 2
        for i in range(4):
            I("s_add_u32 s%d, s%d, %d" % (S_TMP, S_YB, (8 * i + jp) * 1024))
            I("buffer_store_dword v%d, v14, s[%d:%d], s%d offen offset:%d" % (P(0, blk) + i, SRD_WS, SRD_WS + 3, S_TMP, 64 * nt))
    if STAMP:
        stamp()
        I("s_lshl_b32 s%d, s2, 10" % S_TMP)
        I("s_lshl_b32 s%d, s%d, 8" % (S_TMP2, S_WV))
        I("s_add_u32 s%d, s%d, s%d" % (S_TMP, S_TMP, S_TMP2))
        I("s_add_u32 s%d, s%d, %d" % (S_TMP, S_TMP, STAMP_OFF))
        I("v_lshlrev_b32 v90, 2, v8")
        I("buffer_store_dword v15, v90, s[%d:%d], s%d offen" % (SRD_WS, SRD_WS + 3, S_TMP))
    I("s_lshl_b32 s%d, s%d, 1" % (S_TMP2, S_WV))
    I("v_lshlrev_b32 v15, 5, v11")
    I("v_add_u32 v15, s%d, v15" % S_TMP2)
    def M(jp, i):
        return 82 + jp * 4 + i
    for jp in range(2):
        for i in range(4):
            I("v_add_u32 v90, %d, v15" % (8 * i + jp))
            I("v_cmp_gt_u32 vcc, s%d, v90" % S_NVALID)
            I("s_nop 1")
            I("v_cndmask_b32 v%d, 0, 1.0, vcc" % M(jp, i))
    I("v_mov_b32 v91, 0")
    I("v_mov_b32 v92, 0")
    I("v_mov_b32 v93, 0")
    for jp in range(2):
        for i in range(4):
            I("v_add_f32 v91, v91, v%d" % M(jp, i))
            for nt in range(2):
                I("v_fmac_f32 v%d, v%d, v%d" % (92 + nt, P(0, jp * 2 + nt) + i, M(jp, i)))
    def allreduce_q(regs):
        for swap in ("v_permlane32_swap_b32", "v_permlane16_swap_b32"):
            for k, r in enumerate(regs):
                I("v_mov_b32 v%d, v%d" % (120 + k, r))
            I("s_nop 1")
            for k, r in enumerate(regs):
                I("%s v%d, v%d" % (swap, r, 120 + k))
            I("s_nop 1")
            for k, r in enumerate(regs):
                I("v_add_f32 v%d, v%d, v%d" % (r, r, 120 + k))
    allreduce_q([91, 92, 93])
    I("v_rcp_f32 v94, v91")
    I("s_nop 0")
    I("v_mul_f32 v92, v92, v94")
    I("v_mul_f32 v93, v93, v94")
    I("v_mov_b32 v95, 0")
    I("v_mov_b32 v96, 0")
    for jp in range(2):
        for i in range(4):
            for nt in range(2):
                I("v_sub_f32 v97, v%d, v%d" % (P(0, jp * 2 + nt) + i, 92 + nt))
                I("v_mul_f32 v97, v97, v%d" % M(jp, i))
                I("v_fmac_f32 v%d, v97, v97" % (95 + nt))
    allreduce_q([95, 96])
    I("s_lshl_b32 s%d, s%d, 9" % (S_TMP, S_WV))
    I("v_lshlrev_b32 v14, 4, v10")
    I("v_add_u32 v14, s%d, v14" % S_TMP)
    I("v_add_u32 v14, %d, v14" % LDS_STATS)
    I("s_mov_b64 exec, 0xffff")
    for nt in range(2):
        I("v_mov_b32 v100, v%d" % (92 + nt))
        I("v_mov_b32 v101, v%d" % (95 + nt))
        I("v_mov_b32 v102, v91")
        I("v_mov_b32 v103, 0")
        I("ds_write_b128 v14, v[100:103] offset:%d" % (nt * 256))
    I("s_mov_b64 exec, -1")
    I("s_waitcnt lgkmcnt(0)")
    I("s_barrier")
    I("s_cmp_lg_u32 s%d, 0" % S_WV)
    I("s_cbranch_scc1 KA_END")
    I("s_mov_b32 exec_lo, -1")
    I("s_mov_b32 exec_hi, 0")
    I("v_lshlrev_b32 v14, 4, v8")
    I("v_add_u32 v14, %d, v14" % LDS_STATS)
    for w in range(4):
        I("ds_read_b128 v[%d:%d], v14 offset:%d" % (100 + 4 * w, 103 + 4 * w, w * 512))
    I("s_waitcnt lgkmcnt(0)")
    I("v_add_f32 v90, v102, v106")
    I("v_add_f32 v91, v110, v114")
    I("v_add_f32 v90, v90, v91")
    I("v_mul_f32 v91, v100, v102")
    for w in range(1, 4):
        I("v_fmac_f32 v91, v%d, v%d" % (100 + 4 * w, 102 + 4 * w))
    I("v_rcp_f32 v92, v90")
    I("s_nop 0")
    I("v_mul_f32 v91, v91, v92")
    I("v_add_f32 v93, v101, v105")
    I("v_add_f32 v94, v109, v113")
    I("v_add_f32 v93, v93, v94")
    for w in range(4):
        I("v_sub_f32 v94, v%d, v91" % (100 + 4 * w))
        I("v_mul_f32 v95, v94, v%d" % (102 + 4 * w))
        I("v_fmac_f32 v93, v94, v95")
    I("s_lshl_b32 s%d, s%d, 4" % (S_TMP, S_B))
    I("s_add_u32 s%d, s%d, s%d" % (S_TMP, S_TMP, S_MT))
    I("s_lshl_b32 s%d, s%d, 10" % (S_TMP, S_TMP))
    I("s_lshl_b32 s%d, s%d, 7" % (S_TMP2, S_NT))
    I("s_add_u32 s%d, s%d, s%d" % (S_TMP, S_TMP, S_TMP2))
    I("s_add_u32 s%d, s%d, %d" % (S_TMP, S_TMP, STATS_OFF))
    I("v_lshlrev_b32 v14, 2, v8")
    I("buffer_store_dword v91, v14, s[%d:%d], s%d offen" % (SRD_WS, SRD_WS + 3, S_TMP))
    I("s_add_u32 s%d, s%d, 32768" % (S_TMP, S_TMP))
    I("buffer_store_dword v93, v14, s[%d:%d], s%d offen" % (SRD_WS, SRD_WS + 3, S_TMP))
    emit("KA_END:")
    if TL:
        I("s_waitcnt vmcnt(0) lgkmcnt(0)")
        I("s_memrealtime s[58:59]")
        I("s_lshl_b32 s%d, s2, 5" % S_TMP)
        I("s_lshl_b32 s%d, s%d, 3" % (S_TMP2, S_WV))
        I("s_add_u32 s%d, s%d, s%d" % (S_TMP, S_TMP, S_TMP2))
        I("s_add_u32 s%d, s%d, %d" % (S_TMP, S_TMP, TL_OFF))
        I("s_waitcnt lgkmcnt(0)")
        I("s_mov_b64 exec, 1")
        I("v_mov_b32 v100, s62")
        I("v_mov_b32 v101, s58")
        I("v_mov_b32 v102, 0")
        I("buffer_store_dwordx2 v[100:101], v102, s[%d:%d], s%d offen" % (SRD_WS, SRD_WS + 3, S_TMP))
    emit("KA_EXIT:")
    I("s_endpgm")

def f32hex(x):
    import struct
    return "0x%08x" % struct.unpack("<I", struct.pack("<f", x))[0]

def gen_kernel_b():
    emit(".globl %s" % KB)
    emit(".p2align 8")
    emit(".type %s,@function" % KB)
    emit("%s:" % KB)
    I("s_cmp_ge_u32 s2, 250")
    I("s_cbranch_scc1 KB_EXIT")
    if TL:
        I("s_memrealtime s[62:63]")
    I("s_load_dwordx4 s[4:7], s[0:1], 24")
    I("s_load_dwordx2 s[8:9], s[0:1], 40")
    I("s_load_dwordx2 s[10:11], s[0:1], 56")
    I("v_and_b32 v1, 127, v0")
    I("v_lshrrev_b32 v2, 7, v0")
    I("s_nop 0")
    I("v_readfirstlane_b32 s3, v2")
    I("s_cmp_ge_u32 s2, 125")
    I("s_cselect_b32 s30, 1, 0")
    I("s_mul_i32 s31, s30, 125")
    I("s_sub_u32 s31, s2, s31")
    I("s_lshl_b32 s31, s31, 4")
    I("s_add_u32 s32, s31, s3")
    I("s_waitcnt lgkmcnt(0)")
    for srd, ptr, nb in ((12, 4, 512), (16, 6, 512), (20, 8, OUT_BYTES), (24, 10, WS_USED)):
        I("s_mov_b32 s%d, s%d" % (srd, ptr))
        I("s_and_b32 s%d, s%d, 0xffff" % (srd + 1, ptr + 1))
        I("s_mov_b32 s%d, %d" % (srd + 2, nb))
        I("s_mov_b32 s%d, 0x00020000" % (srd + 3))
    I("v_lshlrev_b32 v3, 3, v1")
    I("v_lshlrev_b32 v4, 2, v1")
    I("s_lshl_b32 s33, s30, 11")
    I("s_add_u32 s33, s33, s32")
    I("s_lshl_b32 s33, s33, 10")
    for k in range(8):
        if k > 0:
            I("s_add_u32 s34, s33, %d" % (2048 * k))
        I("buffer_load_dwordx2 v[%d:%d], v3, s[24:27], s%d offen" % (16 + 2 * k, 17 + 2 * k, 33 if k == 0 else 34))
    I("s_lshl_b32 s35, s30, 14")
    I("s_add_u32 s35, s35, %d" % STATS_OFF)
    for arr in range(2):
        for k in range(16):
            if k % 4 == 0:
                I("s_add_u32 s36, s35, %d" % (arr * 32768 + (k // 4) * 4096))
            base = 32 + arr * 32 + 2 * k
            I("buffer_load_dwordx2 v[%d:%d], v3, s[24:27], s36 offen offset:%d" % (base, base + 1, 1024 * (k % 4)))
    I("buffer_load_dword v96, v4, s[12:15], 0 offen")
    I("buffer_load_dword v97, v4, s[16:19], 0 offen")
    I("s_waitcnt vmcnt(0)")
    inv_l = f32hex(1.0 / 1985.0)
    I("v_mov_b32 v110, %s" % inv_l)
    I("v_mov_b32 v111, 0x43000000")
    I("v_mov_b32 v112, 0x42820000")
    I("v_mov_b32 v113, %s" % f32hex(1e-5))
    c0 = -2.0 * 1.4426950408889634 * 0.7978845608028654
    c1 = c0 * 0.044715
    I("v_mov_b32 v114, %s" % f32hex(c0))
    I("v_mov_b32 v115, %s" % f32hex(c1))
    for ch in range(2):
        m = lambda k: 32 + 2 * k + ch
        q = lambda k: 64 + 2 * k + ch
        I("v_add_f32 v98, v%d, v%d" % (m(0), m(1)))
        for k in range(2, 15):
            I("v_add_f32 v98, v98, v%d" % m(k))
        I("v_mul_f32 v98, v98, v111")
        I("v_fmac_f32 v98, v%d, v112" % m(15))
        I("v_mul_f32 v98, v98, v110")
        I("v_add_f32 v99, v%d, v%d" % (q(0), q(1)))
        for k in range(2, 16):
            I("v_add_f32 v99, v99, v%d" % q(k))
        I("v_mov_b32 v100, 0")
        for k in range(15):
            I("v_sub_f32 v101, v%d, v98" % m(k))
            I("v_fmac_f32 v100, v101, v101")
        I("v_fmac_f32 v99, v100, v111")
        I("v_sub_f32 v101, v%d, v98" % m(15))
        I("v_mul_f32 v101, v101, v101")
        I("v_fmac_f32 v99, v101, v112")
        I("v_mul_f32 v99, v99, v110")
        I("v_add_f32 v99, v99, v113")
        I("v_rsq_f32 v99, v99")
        I("s_nop 0")
        if ch == 0:
            I("v_lshlrev_b32 v100, 16, v96")
            I("v_lshlrev_b32 v101, 16, v97")
        else:
            I("v_and_b32 v100, 0xffff0000, v96")
            I("v_and_b32 v101, 0xffff0000, v97")
        I("v_mul_f32 v%d, v99, v100" % (104 + ch))
        I("v_fma_f32 v%d, -v98, v%d, v101" % (106 + ch, 104 + ch))
    I("s_mul_i32 s37, s30, 1985")
    I("s_add_u32 s37, s37, s32")
    I("s_lshl_b32 s37, s37, 9")
    for k in range(8):
        I("s_add_u32 s38, s32, %d" % (2 * k))
        I("s_cmp_ge_u32 s38, 1985")
        I("s_cbranch_scc1 KB_END")
        for ch in range(2):
            y = 16 + 2 * k + ch
            if DEBUG_COPY_Y:
                I("v_mov_b32 v%d, v%d" % (116 + ch, y))
                continue
            I("v_fma_f32 v116, v%d, v%d, v%d" % (y, 104 + ch, 106 + ch))
            I("v_mul_f32 v117, v116, v116")
            I("v_fma_f32 v117, v117, v115, v114")
            I("v_mul_f32 v117, v117, v116")
            I("v_exp_f32 v117, v117")
            I("s_nop 0")
            I("v_add_f32 v117, 1.0, v117")
            I("v_rcp_f32 v117, v117")
            I("s_nop 0")
            I("v_mul_f32 v%d, v116, v117" % (118 + ch))
        if DEBUG_COPY_Y:
            I("v_cvt_pk_bf16_f32 v120, v116, v117")
        else:
            I("v_cvt_pk_bf16_f32 v120, v118, v119")
        I("s_add_u32 s39, s37, %d" % (1024 * k))
        I("buffer_store_dword v120, v4, s[20:23], s39 offen")
    emit("KB_END:")
    if TL:
        I("s_waitcnt vmcnt(0) lgkmcnt(0)")
        I("s_memrealtime s[58:59]")
        I("s_lshl_b32 s40, s2, 5")
        I("v_lshrrev_b32 v100, 6, v0")
        I("s_nop 0")
        I("v_readfirstlane_b32 s41, v100")
        I("s_lshl_b32 s41, s41, 3")
        I("s_add_u32 s40, s40, s41")
        I("s_add_u32 s40, s40, %d" % (TL_OFF + 65536))
        I("s_waitcnt lgkmcnt(0)")
        I("s_mov_b64 exec, 1")
        I("v_mov_b32 v100, s62")
        I("v_mov_b32 v101, s58")
        I("v_mov_b32 v102, 0")
        I("buffer_store_dwordx2 v[100:101], v102, s[24:27], s40 offen")
    emit("KB_EXIT:")
    I("s_endpgm")

def header():
    emit("; Kernarg layout for this problem (64 bytes, ptrs only, base s[0:1]):")
    emit("; @launch kernel=%s grid=(256,1,1) block=(256,1,1) lds=%d" % (KA, LDS_BYTES))
    emit("; @launch kernel=%s grid=(250,1,1) block=(256,1,1) lds=0" % KB)
    emit('.amdgcn_target "amdgcn-amd-amdhsa--gfx950"')
    emit(".text")

def descriptors():
    emit('.section .rodata,"a"')
    for name, nv, acc in ((KA, ACC_OFF + 64, ACC_OFF), (KB, 128, 128)):
        emit(".p2align 6")
        emit(".amdhsa_kernel %s" % name)
        emit("  .amdhsa_next_free_vgpr %d" % nv)
        emit("  .amdhsa_next_free_sgpr 64")
        emit("  .amdhsa_accum_offset %d" % acc)
        emit("  .amdhsa_group_segment_fixed_size 0")
        emit("  .amdhsa_kernarg_size 64")
        emit("  .amdhsa_user_sgpr_count 2")
        emit("  .amdhsa_user_sgpr_kernarg_segment_ptr 1")
        emit("  .amdhsa_system_sgpr_workgroup_id_x 1")
        emit(".end_amdhsa_kernel")

if __name__ == "__main__":
    header()
    gen_kernel_a()
    gen_kernel_b()
    descriptors()
    open(sys.argv[1] if len(sys.argv) > 1 else "standalone__self_sup_conv_stem_hubert__speech.s", "w").write("\n".join(out) + "\n")
```

```python
import sys

STAMP = bool(int(__import__("os").environ.get("STAMP", "0")))
STAMP_OFF = 8 << 20
TL = bool(int(__import__("os").environ.get("TL", "0")))
TL_OFF = 9 << 20
DEBUG_COPY_Y = bool(int(__import__("os").environ.get("DEBUG_COPY_Y", "0")))

KA = "standalone__self_sup_conv_stem_hubert__speech_kernel"
KB = "hubert_norm_kernel"

R = int(__import__("os").environ.get("RING", "4"))
MAP = __import__("os").environ.get("MAP", "B")
XP = int(__import__("os").environ.get("XP", "8"))
XL = bool(int(__import__("os").environ.get("XL", "0")))
PF = int(__import__("os").environ.get("PF", "0"))
SPR = bool(int(__import__("os").environ.get("SPR", "0")))
X1R = int(__import__("os").environ.get("X1R", "0"))
XD0 = int(__import__("os").environ.get("XD0", "0"))
XST = R * 4096
WSH = 12 + (R.bit_length() - 1)
if XL:
    assert R == 4
    WSH = 15
LDS_STATS = 4 << WSH
LDS_BYTES = LDS_STATS + 2048

X_BYTES = 2 * 4000 * 256 * 2
W_BYTES = 31 * 256 * 256 * 2
Y_ROWS_PAD = 2048
Y_BYTES = 2 * Y_ROWS_PAD * 256 * 4
STATS_OFF = Y_BYTES
WS_USED = (10 << 20) if (STAMP or TL) else (Y_BYTES + 65536)
OUT_BYTES = 2 * 1985 * 256 * 2

out = []
def emit(s=""):
    out.append(s)
def I(s):
    out.append("    " + s)

V_XOFF = 1
V_WOFF = [2, 3, 4, 5]
V_TR = [6, 7]
A_BASE = 16
B_BASE = 144
NUM_VGPR = 176
ACC_OFF = 176
def A(set_, slot, s):
    b = A_BASE + set_ * 64 + slot * 8 + 4 * s
    return b
def B(buf, s, nt):
    return B_BASE + buf * 16 + (s * 2 + nt) * 4
def ACC(j, nt):
    return (j * 2 + nt) * 4
def vr(b, n=4):
    return "v[%d:%d]" % (b, b + n - 1)
def ar(b, n=4):
    return "a[%d:%d]" % (b, b + n - 1)

S_WV = 3
S_X = 4
S_BIAS = 8
S_WS = 10
SRD_X = 12
SRD_W = 16
SRD_WS = 20
SRD_B = 24
S_LDS = 28
S_NT = 29
S_XB = 30
S_W0 = 36
S_WT = 37
S_B = 38
S_L0 = 39
S_MT = 40
S_TMP = 41
S_TMP2 = 42
S_NVALID = 43
S_EXEC_SAVE = 44
S_MASK = 46
S_YB = 48
S_HI = 56

class VmQ:
    def __init__(self):
        self.q = []
    def issue(self, tag):
        self.q.append(tag)
    def wait_for(self, tag):
        idx = None
        for i, t in enumerate(self.q):
            if t == tag:
                idx = i
        if idx is None:
            return
        n = len(self.q) - 1 - idx
        assert n <= 63
        I("s_waitcnt vmcnt(%d)" % n)
        self.q = self.q[idx + 1:]
    def wait_all(self):
        I("s_waitcnt vmcnt(0)")
        self.q = []

_stamp_idx = [0]
def stamp():
    if not STAMP:
        return
    I("s_memtime s[60:61]")
    I("s_waitcnt lgkmcnt(0)")
    I("v_writelane_b32 v15, s60, %d" % _stamp_idx[0])
    _stamp_idx[0] += 1

def xoff(g, p, s):
    tot = (2 * g + p) * 512 + 64 * s
    return S_XB + tot // 4096, tot % 4096

def tap_of(sig):
    return 2 * sig if sig < 16 else 2 * (sig - 16) + 1

def gen_kernel_a():
    vm = VmQ()
    emit(".globl %s" % KA)
    emit(".p2align 8")
    emit(".type %s,@function" % KA)
    emit("%s:" % KA)
    I("s_cmp_ge_u32 s2, 256")
    I("s_cbranch_scc1 KA_EXIT")
    if TL:
        I("s_memrealtime s[62:63]")
    I("s_load_dwordx4 s[4:7], s[0:1], 0")
    I("s_load_dwordx2 s[8:9], s[0:1], 16")
    I("s_load_dwordx2 s[10:11], s[0:1], 56")
    I("v_and_b32 v8, 63, v0")
    I("v_lshrrev_b32 v9, 6, v0")
    I("v_and_b32 v10, 15, v8")
    I("v_lshrrev_b32 v11, 4, v8")
    I("v_readfirstlane_b32 s%d, v9" % S_WV)
    I("v_lshlrev_b32 v%d, 13, v10" % V_XOFF)
    I("v_lshl_add_u32 v%d, v11, 4, v%d" % (V_XOFF, V_XOFF))
    I("v_lshrrev_b32 v12, 2, v8")
    I("v_and_b32 v13, 3, v8")
    I("v_lshrrev_b32 v14, 5, v8")
    I("v_lshlrev_b32 v14, 1, v14")
    I("v_xor_b32 v13, v13, v14")
    I("v_lshlrev_b32 v%d, 9, v12" % V_WOFF[0])
    I("v_lshl_add_u32 v%d, v13, 4, v%d" % (V_WOFF[0], V_WOFF[0]))
    for c in range(1, 4):
        I("v_add_u32 v%d, %d, v%d" % (V_WOFF[c], 7168 * c, V_WOFF[0]))
    I("v_lshrrev_b32 v12, 2, v10")
    I("v_lshl_add_u32 v12, v11, 3, v12")
    I("v_lshlrev_b32 v12, 6, v12")
    I("v_and_b32 v13, 3, v10")
    I("v_lshl_add_u32 v12, v13, 3, v12")
    I("v_and_b32 v13, 1, v11")
    I("v_lshlrev_b32 v13, 5, v13")
    I("s_lshl_b32 s%d, s%d, %d" % (S_LDS, S_WV, WSH))
    I("v_add_u32 v%d, v12, v13" % V_TR[0])
    I("v_add_u32 v%d, s%d, v%d" % (V_TR[0], S_LDS, V_TR[0]))
    I("v_xor_b32 v%d, 32, v%d" % (V_TR[1], V_TR[0]))
    if XL:
        I("v_lshrrev_b32 v13, 3, v8")
        I("v_and_b32 v14, 7, v8")
        I("v_xor_b32 v14, v14, v13")
        I("v_lshlrev_b32 v13, 13, v13")
        I("v_lshl_add_u32 v13, v14, 4, v13")
        I("v_and_b32 v12, 7, v10")
        I("v_xor_b32 v14, v11, v12")
        I("v_lshlrev_b32 v14, 4, v14")
        I("v_lshl_add_u32 v14, v10, 7, v14")
        I("s_add_u32 s%d, s%d, %d" % (S_TMP, S_LDS, XST))
        I("v_add_u32 v14, s%d, v14" % S_TMP)
        I("v_mov_b32 v8, v13")
        I("v_add_u32 v9, 0x10000, v13")
        I("v_mov_b32 v10, v14")
        I("v_xor_b32 v11, 64, v14")
    if MAP == "B":
        I("s_lshr_b32 s%d, s2, 5" % S_NT)
        I("s_and_b32 s%d, s2, 31" % S_TMP)
    elif MAP == "A":
        I("s_and_b32 s%d, s2, 7" % S_NT)
        I("s_lshr_b32 s%d, s2, 3" % S_TMP)
    elif MAP == "H2":
        I("s_and_b32 s%d, s2, 1" % S_NT)
        I("s_lshl_b32 s%d, s%d, 2" % (S_NT, S_NT))
        I("s_bfe_u32 s%d, s2, 0x20003" % S_TMP2)
        I("s_or_b32 s%d, s%d, s%d" % (S_NT, S_NT, S_TMP2))
        I("s_lshr_b32 s%d, s2, 5" % S_TMP)
        I("s_bfe_u32 s%d, s2, 0x20001" % S_TMP2)
        I("s_lshl_b32 s%d, s%d, 3" % (S_TMP2, S_TMP2))
        I("s_or_b32 s%d, s%d, s%d" % (S_TMP, S_TMP, S_TMP2))
    else:
        I("s_and_b32 s%d, s2, 3" % S_NT)
        I("s_lshl_b32 s%d, s%d, 1" % (S_NT, S_NT))
        I("s_bfe_u32 s%d, s2, 0x10003" % S_TMP2)
        I("s_or_b32 s%d, s%d, s%d" % (S_NT, S_NT, S_TMP2))
        I("s_lshr_b32 s%d, s2, 4" % S_TMP)
        I("s_bfe_u32 s%d, s2, 0x10002" % S_TMP2)
        I("s_lshl_b32 s%d, s%d, 4" % (S_TMP2, S_TMP2))
        I("s_or_b32 s%d, s%d, s%d" % (S_TMP, S_TMP, S_TMP2))
    I("s_lshr_b32 s%d, s%d, 4" % (S_B, S_TMP))
    I("s_and_b32 s%d, s%d, 15" % (S_MT, S_TMP))
    I("s_lshl_b32 s%d, s%d, 7" % (S_L0, S_MT))
    I("s_waitcnt lgkmcnt(0)")
    for srd, ptr, nb in ((SRD_X, 4, X_BYTES), (SRD_W, 6, W_BYTES), (SRD_WS, 10, WS_USED), (SRD_B, 8, 512)):
        I("s_mov_b32 s%d, s%d" % (srd, ptr))
        I("s_and_b32 s%d, s%d, 0xffff" % (srd + 1, ptr + 1))
        I("s_mov_b32 s%d, %d" % (srd + 2, nb))
        I("s_mov_b32 s%d, 0x00020000" % (srd + 3))
    I("s_mul_i32 s%d, s%d, 2048000" % (S_TMP, S_B))
    I("s_lshl_b32 s%d, s%d, 10" % (S_TMP2, S_L0))
    I("s_add_u32 s%d, s%d, s%d" % (S_TMP, S_TMP, S_TMP2))
    I("s_lshl_b32 s%d, s%d, 7" % (S_TMP2, S_WV))
    I("s_add_u32 s%d, s%d, s%d" % (S_XB, S_TMP, S_TMP2))
    for i in range(1, 6):
        I("s_add_u32 s%d, s%d, %d" % (S_XB + i, S_XB, 4096 * i))
    I("s_lshl_b32 s%d, s%d, 15" % (S_TMP, S_WV))
    I("s_lshl_b32 s%d, s%d, 6" % (S_TMP2, S_NT))
    I("s_add_u32 s%d, s%d, s%d" % (S_W0, S_TMP, S_TMP2))
    I("s_mov_b32 s%d, 0x80008000" % S_MASK)
    I("s_mov_b32 s%d, 0x80008000" % (S_MASK + 1))
    I("s_sub_u32 s%d, 1985, s%d" % (S_NVALID, S_L0))
    I("s_min_u32 s%d, s%d, 128" % (S_NVALID, S_NVALID))
    stamp()

    def dma(sig):
        st = sig % R
        L = []
        L.append(("s", "s_add_u32 s%d, s%d, %d" % (S_WT, S_W0, tap_of(sig) * 131072)))
        L.append(("s", "s_add_u32 m0, s%d, %d" % (S_LDS, st * 4096)))
        L.append(("s", "s_nop 0"))
        for c in range(4):
            L.append(("vm:dma%d" % sig,
                      "buffer_load_dwordx4 v%d, s[%d:%d], s%d offen offset:%d lds" % (V_WOFF[c], SRD_W, SRD_W + 3, S_WT, 1024 * c)))
        return L

    def xload(set_, slot, g, p, tag):
        L = []
        for s in range(2):
            sg, imm = xoff(g, p, s)
            L.append(("vm:" + tag, "buffer_load_dwordx4 %s, v%d, s[%d:%d], s%d offen offset:%d" %
                      (vr(A(set_, slot, s)), V_XOFF, SRD_X, SRD_X + 3, sg, imm)))
        return L

    def xdma(g, p, tag):
        L = []
        tot = (2 * g + p) * 512
        sg, imm = S_XB + tot // 4096, tot % 4096
        for h in range(2):
            L.append(("s", "s_add_u32 m0, s%d, %d" % (S_LDS, XST + g * 2048 + h * 1024 - imm)))
            L.append(("s", "s_nop 0"))
            L.append(("vm:" + tag, "buffer_load_dwordx4 v%d, s[%d:%d], s%d offen offset:%d lds" % (8 + h, SRD_X, SRD_X + 3, sg, imm)))
        return L

    def xrd(set_, g):
        return [("ds", "ds_read_b128 %s, v%d offset:%d" % (vr(A(set_, g, s)), 10 + s, g * 2048)) for s in range(2)]

    def trreads(sig):
        buf = sig % 2
        st = sig % R
        L = []
        for s in range(2):
            for nt in range(2):
                for jh in range(2):
                    b = B(buf, s, nt) + 2 * jh
                    L.append(("ds", "ds_read_b64_tr_b16 %s, v%d offset:%d" % (vr(b, 2), V_TR[nt], st * 4096 + (32 * s + 4 * jh) * 64)))
        return L

    def put(items):
        for kind, txt in items:
            if kind.startswith("vm:"):
                vm.issue(kind[3:])
            elif kind.startswith("wait:"):
                vm.wait_for(kind[5:])
                continue
            I(txt)

    put(dma(0))
    for f in range(8):
        put(xdma(f, 0, "xa0_%d" % f) if XL else xload(0, f, f, 0, "xa0_%d" % f))
    for sig in range(1, R):
        put(dma(sig))
    if X1R:
        for f in range(8):
            put(xload(1, f, f, 1, "xa1"))
    if PF:
        I("s_lshr_b32 s%d, s2, 3" % S_TMP)
        I("s_lshl_b32 s%d, s%d, 2" % (S_TMP, S_TMP))
        I("s_add_u32 s%d, s%d, s%d" % (S_TMP, S_TMP, S_WV))
        I("s_lshl_b32 s%d, s%d, 15" % (S_TMP, S_TMP))
        if MAP == "B":
            I("s_mov_b32 s%d, 0" % S_TMP2)
        elif MAP == "H2":
            I("s_and_b32 s%d, s2, 1" % S_TMP2)
            I("s_lshl_b32 s%d, s%d, 8" % (S_TMP2, S_TMP2))
        else:
            I("s_and_b32 s%d, s2, 3" % S_TMP2)
            I("s_lshl_b32 s%d, s%d, 7" % (S_TMP2, S_TMP2))
        I("s_add_u32 s%d, s%d, s%d" % (S_TMP, S_TMP, S_TMP2))
        I("v_and_b32 v12, 63, v0")
        I("v_lshlrev_b32 v12, 9, v12")
        I("v_add_u32 v12, s%d, v12" % S_TMP)
        I("buffer_load_dword v13, v12, s[%d:%d], 0 offen" % (SRD_W, SRD_W + 3))
        vm.issue("pf")
        if MAP in ("H2", "B"):
            I("buffer_load_dword v14, v12, s[%d:%d], 0 offen offset:128" % (SRD_W, SRD_W + 3))
            vm.issue("pf")
        if MAP == "B":
            I("buffer_load_dword v13, v12, s[%d:%d], 0 offen offset:256" % (SRD_W, SRD_W + 3))
            I("buffer_load_dword v14, v12, s[%d:%d], 0 offen offset:384" % (SRD_W, SRD_W + 3))
            vm.issue("pf")
            vm.issue("pf")
        if PF >= 2:
            I("v_and_b32 v12, 63, v0")
            I("v_lshlrev_b32 v12, 10, v12")
            for i in range(3):
                I("buffer_load_dword v13, v12, s[%d:%d], s%d offen offset:512" % (SRD_X, SRD_X + 3, S_XB))
                vm.issue("pf")
                if i < 2:
                    I("v_add_u32 v12, 0x10000, v12")
    stamp()
    for i in range(64):
        I("v_accvgpr_write_b32 a%d, 0" % i)
    stamp()
    vm.wait_for("dma0")
    stamp()
    put(trreads(0))
    if XL:
        for f in range(8):
            vm.wait_for("xa0_%d" % f)
            put(xrd(0, f))
    if STAMP:
        stamp()
    NSTEP = 31
    for sig in range(NSTEP):
        p = 0 if sig < 16 else 1
        u = sig if sig < 16 else sig - 16
        umax = 15 if p == 0 else 14
        buf = sig % 2
        emit("; ---- step %d (p=%d u=%d tap=%d)" % (sig, p, u, tap_of(sig)))
        side = {}
        def at(k, items):
            side.setdefault(k, []).extend(items)
        if sig == 0 and XL:
            pre = []
        elif sig == 0:
            pre = []
            for f in range(8):
                at(4 * f - 1, [("wait:xa0_%d" % f, "")]) if f > 0 else pre.append(("wait:xa0_0", ""))
        elif sig == 16 and (X1R or not XL):
            pre = [("wait:xa1", "")]
        else:
            pre = []
        g_new = u + 8
        if g_new <= umax + 7:
            slot = u % 8
            for k in range(8):
                reg = A(p, slot, 0) + k
                at((3 + k) if SPR else (3 + k // 2), [("v", "v_mov_b32_dpp v%d, v%d row_shl:1 row_mask:0xf bank_mask:0xf" % (reg, reg))])
            L = [("s", "s_mov_b64 exec, s[%d:%d]" % (S_MASK, S_MASK + 1))]
            L += xload(p, slot, g_new, p, "bnd%d" % sig)
            L += [("s", "s_mov_b64 exec, -1")]
            if SPR:
                at(11, L)
            else:
                at(7, L)
        if u >= 1:
            at(27, [("wait:bnd%d" % (sig - 1), "")])
        if sig + R < NSTEP:
            if SPR:
                dl = dma(sig + R)
                at(13, dl[0:2])
                for c in range(4):
                    at(14 + c, [dl[3 + c]])
            else:
                at(9, dma(sig + R))
        if sig + 1 < NSTEP:
            L = [("wait:dma%d" % (sig + 1), "")] + trreads(sig + 1)
            for k, it in enumerate(L):
                at((18 + max(k - 1, 0)) if SPR else (14 + k // 2), [it])
        if XL and (X1R or int(__import__("os").environ.get("NOX1", "0"))):
            pass
        elif XL:
            if XD0 <= sig < XD0 + 8:
                gg = sig - XD0
                xl_ = xdma(gg, 1, "xa1_%d" % gg)
                if SPR:
                    at(26, [xl_[0]]); at(27, [xl_[2]]); at(28, [xl_[3]]); at(29, [xl_[5]])
                else:
                    at(22, xl_)
            if 8 <= sig < 16:
                at(24 if SPR else 24, [("wait:xa1_%d" % (sig - 8), "")] + xrd(1, sig - 8))
        elif XP == 8:
            if sig < 8:
                at(22, xload(1, sig, sig, 1, "xa1"))
        else:
            if sig < 16:
                at(22, [xload(1, sig // 2, sig // 2, 1, "xa1")[sig % 2]])
        I("s_waitcnt lgkmcnt(0)")
        put(pre)
        stamp()
        idx = 0
        for j in range(8):
            slot = (u + j) % 8
            for s in range(2):
                for nt in range(2):
                    I("v_mfma_f32_16x16x32_bf16 %s, %s, %s, %s" %
                      (ar(ACC(j, nt)), vr(A(p, slot, s)), vr(B(buf, s, nt)), ar(ACC(j, nt))))
                    if idx in side:
                        put(side[idx])
                    idx += 1
    emit("; ---- epilogue")
    stamp()
    vm.wait_all()
    stamp()
    I("s_nop 7")
    I("s_nop 7")
    I("v_and_b32 v8, 63, v0")
    I("v_lshlrev_b32 v9, 4, v8")
    I("v_add_u32 v12, s%d, v9" % S_LDS)
    for j in range(8):
        for nt in range(2):
            I("ds_write_b128 v12, %s offset:%d" % (ar(ACC(j, nt)), (j * 2 + nt) * 1024))
    I("s_waitcnt lgkmcnt(0)")
    I("s_barrier")
    I("s_lshl_b32 s%d, s%d, 12" % (S_TMP, S_WV))
    I("v_add_u32 v13, s%d, v9" % S_TMP)
    def P(w, blk):
        return 16 + (w * 4 + blk) * 4
    for w in range(4):
        if w > 0:
            I("v_add_u32 v13, %d, v13" % (1 << WSH))
        for blk in range(4):
            I("ds_read_b128 %s, v13 offset:%d" % (vr(P(w, blk)), blk * 1024))
    I("v_and_b32 v10, 15, v8")
    I("v_lshrrev_b32 v11, 4, v8")
    I("s_lshl_b32 s%d, s%d, 6" % (S_TMP, S_NT))
    I("v_lshlrev_b32 v14, 1, v10")
    I("buffer_load_ushort v80, v14, s[%d:%d], s%d offen" % (SRD_B, SRD_B + 3, S_TMP))
    I("buffer_load_ushort v81, v14, s[%d:%d], s%d offen offset:32" % (SRD_B, SRD_B + 3, S_TMP))
    I("s_waitcnt vmcnt(0) lgkmcnt(0)")
    I("v_lshlrev_b32 v80, 16, v80")
    I("v_lshlrev_b32 v81, 16, v81")
    for blk in range(4):
        nt = blk % 2
        for i in range(4):
            r = P(0, blk) + i
            I("v_add_f32 v%d, v%d, v%d" % (r, r, P(1, blk) + i))
            I("v_add_f32 v%d, v%d, v%d" % (P(2, blk) + i, P(2, blk) + i, P(3, blk) + i))
            I("v_add_f32 v%d, v%d, v%d" % (r, r, P(2, blk) + i))
            I("v_add_f32 v%d, v%d, v%d" % (r, r, 80 + nt))
    I("v_lshlrev_b32 v14, 15, v11")
    I("v_lshl_add_u32 v14, v10, 2, v14")
    I("s_lshl_b32 s%d, s%d, 11" % (S_TMP, S_B))
    I("s_add_u32 s%d, s%d, s%d" % (S_TMP, S_TMP, S_L0))
    I("s_lshl_b32 s%d, s%d, 1" % (S_TMP2, S_WV))
    I("s_add_u32 s%d, s%d, s%d" % (S_TMP, S_TMP, S_TMP2))
    I("s_lshl_b32 s%d, s%d, 10" % (S_TMP, S_TMP))
    I("s_lshl_b32 s%d, s%d, 7" % (S_TMP2, S_NT))
    I("s_add_u32 s%d, s%d, s%d" % (S_YB, S_TMP, S_TMP2))
    for blk in range(4):
        jp, nt = blk // 2, blk % 2
        for i in range(4):
            I("s_add_u32 s%d, s%d, %d" % (S_TMP, S_YB, (8 * i + jp) * 1024))
            I("buffer_store_dword v%d, v14, s[%d:%d], s%d offen offset:%d" % (P(0, blk) + i, SRD_WS, SRD_WS + 3, S_TMP, 64 * nt))
    if STAMP:
        stamp()
        I("s_lshl_b32 s%d, s2, 10" % S_TMP)
        I("s_lshl_b32 s%d, s%d, 8" % (S_TMP2, S_WV))
        I("s_add_u32 s%d, s%d, s%d" % (S_TMP, S_TMP, S_TMP2))
        I("s_add_u32 s%d, s%d, %d" % (S_TMP, S_TMP, STAMP_OFF))
        I("v_lshlrev_b32 v90, 2, v8")
        I("buffer_store_dword v15, v90, s[%d:%d], s%d offen" % (SRD_WS, SRD_WS + 3, S_TMP))
    I("s_lshl_b32 s%d, s%d, 1" % (S_TMP2, S_WV))
    I("v_lshlrev_b32 v15, 5, v11")
    I("v_add_u32 v15, s%d, v15" % S_TMP2)
    def M(jp, i):
        return 82 + jp * 4 + i
    for jp in range(2):
        for i in range(4):
            I("v_add_u32 v90, %d, v15" % (8 * i + jp))
            I("v_cmp_gt_u32 vcc, s%d, v90" % S_NVALID)
            I("s_nop 1")
            I("v_cndmask_b32 v%d, 0, 1.0, vcc" % M(jp, i))
    I("v_mov_b32 v91, 0")
    I("v_mov_b32 v92, 0")
    I("v_mov_b32 v93, 0")
    for jp in range(2):
        for i in range(4):
            I("v_add_f32 v91, v91, v%d" % M(jp, i))
            for nt in range(2):
                I("v_fmac_f32 v%d, v%d, v%d" % (92 + nt, P(0, jp * 2 + nt) + i, M(jp, i)))
    def allreduce_q(regs):
        for swap in ("v_permlane32_swap_b32", "v_permlane16_swap_b32"):
            for k, r in enumerate(regs):
                I("v_mov_b32 v%d, v%d" % (120 + k, r))
            I("s_nop 1")
            for k, r in enumerate(regs):
                I("%s v%d, v%d" % (swap, r, 120 + k))
            I("s_nop 1")
            for k, r in enumerate(regs):
                I("v_add_f32 v%d, v%d, v%d" % (r, r, 120 + k))
    allreduce_q([91, 92, 93])
    I("v_rcp_f32 v94, v91")
    I("s_nop 0")
    I("v_mul_f32 v92, v92, v94")
    I("v_mul_f32 v93, v93, v94")
    I("v_mov_b32 v95, 0")
    I("v_mov_b32 v96, 0")
    for jp in range(2):
        for i in range(4):
            for nt in range(2):
                I("v_sub_f32 v97, v%d, v%d" % (P(0, jp * 2 + nt) + i, 92 + nt))
                I("v_mul_f32 v97, v97, v%d" % M(jp, i))
                I("v_fmac_f32 v%d, v97, v97" % (95 + nt))
    allreduce_q([95, 96])
    I("s_lshl_b32 s%d, s%d, 9" % (S_TMP, S_WV))
    I("v_lshlrev_b32 v14, 4, v10")
    I("v_add_u32 v14, s%d, v14" % S_TMP)
    I("v_add_u32 v14, %d, v14" % LDS_STATS)
    I("s_mov_b64 exec, 0xffff")
    for nt in range(2):
        I("v_mov_b32 v100, v%d" % (92 + nt))
        I("v_mov_b32 v101, v%d" % (95 + nt))
        I("v_mov_b32 v102, v91")
        I("v_mov_b32 v103, 0")
        I("ds_write_b128 v14, v[100:103] offset:%d" % (nt * 256))
    I("s_mov_b64 exec, -1")
    I("s_waitcnt lgkmcnt(0)")
    I("s_barrier")
    I("s_cmp_lg_u32 s%d, 0" % S_WV)
    I("s_cbranch_scc1 KA_END")
    I("s_mov_b32 exec_lo, -1")
    I("s_mov_b32 exec_hi, 0")
    I("v_lshlrev_b32 v14, 4, v8")
    I("v_add_u32 v14, %d, v14" % LDS_STATS)
    for w in range(4):
        I("ds_read_b128 v[%d:%d], v14 offset:%d" % (100 + 4 * w, 103 + 4 * w, w * 512))
    I("s_waitcnt lgkmcnt(0)")
    I("v_add_f32 v90, v102, v106")
    I("v_add_f32 v91, v110, v114")
    I("v_add_f32 v90, v90, v91")
    I("v_mul_f32 v91, v100, v102")
    for w in range(1, 4):
        I("v_fmac_f32 v91, v%d, v%d" % (100 + 4 * w, 102 + 4 * w))
    I("v_rcp_f32 v92, v90")
    I("s_nop 0")
    I("v_mul_f32 v91, v91, v92")
    I("v_add_f32 v93, v101, v105")
    I("v_add_f32 v94, v109, v113")
    I("v_add_f32 v93, v93, v94")
    for w in range(4):
        I("v_sub_f32 v94, v%d, v91" % (100 + 4 * w))
        I("v_mul_f32 v95, v94, v%d" % (102 + 4 * w))
        I("v_fmac_f32 v93, v94, v95")
    I("s_lshl_b32 s%d, s%d, 4" % (S_TMP, S_B))
    I("s_add_u32 s%d, s%d, s%d" % (S_TMP, S_TMP, S_MT))
    I("s_lshl_b32 s%d, s%d, 10" % (S_TMP, S_TMP))
    I("s_lshl_b32 s%d, s%d, 7" % (S_TMP2, S_NT))
    I("s_add_u32 s%d, s%d, s%d" % (S_TMP, S_TMP, S_TMP2))
    I("s_add_u32 s%d, s%d, %d" % (S_TMP, S_TMP, STATS_OFF))
    I("v_lshlrev_b32 v14, 2, v8")
    I("buffer_store_dword v91, v14, s[%d:%d], s%d offen" % (SRD_WS, SRD_WS + 3, S_TMP))
    I("s_add_u32 s%d, s%d, 32768" % (S_TMP, S_TMP))
    I("buffer_store_dword v93, v14, s[%d:%d], s%d offen" % (SRD_WS, SRD_WS + 3, S_TMP))
    emit("KA_END:")
    if TL:
        I("s_waitcnt vmcnt(0) lgkmcnt(0)")
        I("s_memrealtime s[58:59]")
        I("s_lshl_b32 s%d, s2, 5" % S_TMP)
        I("s_lshl_b32 s%d, s%d, 3" % (S_TMP2, S_WV))
        I("s_add_u32 s%d, s%d, s%d" % (S_TMP, S_TMP, S_TMP2))
        I("s_add_u32 s%d, s%d, %d" % (S_TMP, S_TMP, TL_OFF))
        I("s_waitcnt lgkmcnt(0)")
        I("s_mov_b64 exec, 1")
        I("v_mov_b32 v100, s62")
        I("v_mov_b32 v101, s58")
        I("v_mov_b32 v102, 0")
        I("buffer_store_dwordx2 v[100:101], v102, s[%d:%d], s%d offen" % (SRD_WS, SRD_WS + 3, S_TMP))
    emit("KA_EXIT:")
    I("s_endpgm")

def f32hex(x):
    import struct
    return "0x%08x" % struct.unpack("<I", struct.pack("<f", x))[0]

def gen_kernel_b():
    emit(".globl %s" % KB)
    emit(".p2align 8")
    emit(".type %s,@function" % KB)
    emit("%s:" % KB)
    I("s_cmp_ge_u32 s2, 250")
    I("s_cbranch_scc1 KB_EXIT")
    if TL:
        I("s_memrealtime s[62:63]")
    I("s_load_dwordx4 s[4:7], s[0:1], 24")
    I("s_load_dwordx2 s[8:9], s[0:1], 40")
    I("s_load_dwordx2 s[10:11], s[0:1], 56")
    I("v_and_b32 v1, 127, v0")
    I("v_lshrrev_b32 v2, 7, v0")
    I("s_nop 0")
    I("v_readfirstlane_b32 s3, v2")
    I("s_cmp_ge_u32 s2, 125")
    I("s_cselect_b32 s30, 1, 0")
    I("s_mul_i32 s31, s30, 125")
    I("s_sub_u32 s31, s2, s31")
    I("s_lshl_b32 s31, s31, 4")
    I("s_add_u32 s32, s31, s3")
    I("s_waitcnt lgkmcnt(0)")
    for srd, ptr, nb in ((12, 4, 512), (16, 6, 512), (20, 8, OUT_BYTES), (24, 10, WS_USED)):
        I("s_mov_b32 s%d, s%d" % (srd, ptr))
        I("s_and_b32 s%d, s%d, 0xffff" % (srd + 1, ptr + 1))
        I("s_mov_b32 s%d, %d" % (srd + 2, nb))
        I("s_mov_b32 s%d, 0x00020000" % (srd + 3))
    I("v_lshlrev_b32 v3, 3, v1")
    I("v_lshlrev_b32 v4, 2, v1")
    I("s_lshl_b32 s33, s30, 11")
    I("s_add_u32 s33, s33, s32")
    I("s_lshl_b32 s33, s33, 10")
    for k in range(8):
        if k > 0:
            I("s_add_u32 s34, s33, %d" % (2048 * k))
        I("buffer_load_dwordx2 v[%d:%d], v3, s[24:27], s%d offen" % (16 + 2 * k, 17 + 2 * k, 33 if k == 0 else 34))
    I("s_lshl_b32 s35, s30, 14")
    I("s_add_u32 s35, s35, %d" % STATS_OFF)
    for arr in range(2):
        for k in range(16):
            if k % 4 == 0:
                I("s_add_u32 s36, s35, %d" % (arr * 32768 + (k // 4) * 4096))
            base = 32 + arr * 32 + 2 * k
            I("buffer_load_dwordx2 v[%d:%d], v3, s[24:27], s36 offen offset:%d" % (base, base + 1, 1024 * (k % 4)))
    I("buffer_load_dword v96, v4, s[12:15], 0 offen")
    I("buffer_load_dword v97, v4, s[16:19], 0 offen")
    I("s_waitcnt vmcnt(0)")
    inv_l = f32hex(1.0 / 1985.0)
    I("v_mov_b32 v110, %s" % inv_l)
    I("v_mov_b32 v111, 0x43000000")
    I("v_mov_b32 v112, 0x42820000")
    I("v_mov_b32 v113, %s" % f32hex(1e-5))
    c0 = -2.0 * 1.4426950408889634 * 0.7978845608028654
    c1 = c0 * 0.044715
    I("v_mov_b32 v114, %s" % f32hex(c0))
    I("v_mov_b32 v115, %s" % f32hex(c1))
    for ch in range(2):
        m = lambda k: 32 + 2 * k + ch
        q = lambda k: 64 + 2 * k + ch
        I("v_add_f32 v98, v%d, v%d" % (m(0), m(1)))
        for k in range(2, 15):
            I("v_add_f32 v98, v98, v%d" % m(k))
        I("v_mul_f32 v98, v98, v111")
        I("v_fmac_f32 v98, v%d, v112" % m(15))
        I("v_mul_f32 v98, v98, v110")
        I("v_add_f32 v99, v%d, v%d" % (q(0), q(1)))
        for k in range(2, 16):
            I("v_add_f32 v99, v99, v%d" % q(k))
        I("v_mov_b32 v100, 0")
        for k in range(15):
            I("v_sub_f32 v101, v%d, v98" % m(k))
            I("v_fmac_f32 v100, v101, v101")
        I("v_fmac_f32 v99, v100, v111")
        I("v_sub_f32 v101, v%d, v98" % m(15))
        I("v_mul_f32 v101, v101, v101")
        I("v_fmac_f32 v99, v101, v112")
        I("v_mul_f32 v99, v99, v110")
        I("v_add_f32 v99, v99, v113")
        I("v_rsq_f32 v99, v99")
        I("s_nop 0")
        if ch == 0:
            I("v_lshlrev_b32 v100, 16, v96")
            I("v_lshlrev_b32 v101, 16, v97")
        else:
            I("v_and_b32 v100, 0xffff0000, v96")
            I("v_and_b32 v101, 0xffff0000, v97")
        I("v_mul_f32 v%d, v99, v100" % (104 + ch))
        I("v_fma_f32 v%d, -v98, v%d, v101" % (106 + ch, 104 + ch))
    I("s_mul_i32 s37, s30, 1985")
    I("s_add_u32 s37, s37, s32")
    I("s_lshl_b32 s37, s37, 9")
    for k in range(8):
        I("s_add_u32 s38, s32, %d" % (2 * k))
        I("s_cmp_ge_u32 s38, 1985")
        I("s_cbranch_scc1 KB_END")
        for ch in range(2):
            y = 16 + 2 * k + ch
            if DEBUG_COPY_Y:
                I("v_mov_b32 v%d, v%d" % (116 + ch, y))
                continue
            I("v_fma_f32 v116, v%d, v%d, v%d" % (y, 104 + ch, 106 + ch))
            I("v_mul_f32 v117, v116, v116")
            I("v_fma_f32 v117, v117, v115, v114")
            I("v_mul_f32 v117, v117, v116")
            I("v_exp_f32 v117, v117")
            I("s_nop 0")
            I("v_add_f32 v117, 1.0, v117")
            I("v_rcp_f32 v117, v117")
            I("s_nop 0")
            I("v_mul_f32 v%d, v116, v117" % (118 + ch))
        if DEBUG_COPY_Y:
            I("v_cvt_pk_bf16_f32 v120, v116, v117")
        else:
            I("v_cvt_pk_bf16_f32 v120, v118, v119")
        I("s_add_u32 s39, s37, %d" % (1024 * k))
        I("buffer_store_dword v120, v4, s[20:23], s39 offen")
    emit("KB_END:")
    if TL:
        I("s_waitcnt vmcnt(0) lgkmcnt(0)")
        I("s_memrealtime s[58:59]")
        I("s_lshl_b32 s40, s2, 5")
        I("v_lshrrev_b32 v100, 6, v0")
        I("s_nop 0")
        I("v_readfirstlane_b32 s41, v100")
        I("s_lshl_b32 s41, s41, 3")
        I("s_add_u32 s40, s40, s41")
        I("s_add_u32 s40, s40, %d" % (TL_OFF + 65536))
        I("s_waitcnt lgkmcnt(0)")
        I("s_mov_b64 exec, 1")
        I("v_mov_b32 v100, s62")
        I("v_mov_b32 v101, s58")
        I("v_mov_b32 v102, 0")
        I("buffer_store_dwordx2 v[100:101], v102, s[24:27], s40 offen")
    emit("KB_EXIT:")
    I("s_endpgm")

def header():
    emit("; Kernarg layout for this problem (64 bytes, ptrs only, base s[0:1]):")
    emit("; @launch kernel=%s grid=(256,1,1) block=(256,1,1) lds=%d" % (KA, LDS_BYTES))
    emit("; @launch kernel=%s grid=(250,1,1) block=(256,1,1) lds=0" % KB)
    emit('.amdgcn_target "amdgcn-amd-amdhsa--gfx950"')
    emit(".text")

def descriptors():
    emit('.section .rodata,"a"')
    for name, nv, acc in ((KA, ACC_OFF + 64, ACC_OFF), (KB, 128, 128)):
        emit(".p2align 6")
        emit(".amdhsa_kernel %s" % name)
        emit("  .amdhsa_next_free_vgpr %d" % nv)
        emit("  .amdhsa_next_free_sgpr 64")
        emit("  .amdhsa_accum_offset %d" % acc)
        emit("  .amdhsa_group_segment_fixed_size 0")
        emit("  .amdhsa_kernarg_size 64")
        emit("  .amdhsa_user_sgpr_count 2")
        emit("  .amdhsa_user_sgpr_kernarg_segment_ptr 1")
        emit("  .amdhsa_system_sgpr_workgroup_id_x 1")
        emit(".end_amdhsa_kernel")

if __name__ == "__main__":
    header()
    gen_kernel_a()
    gen_kernel_b()
    descriptors()
    open(sys.argv[1] if len(sys.argv) > 1 else "standalone__self_sup_conv_stem_hubert__speech.s", "w").write("\n".join(out) + "\n")
```
